```python
import torch

def _softmax(x, axis=-1):
    return torch.softmax(x, dim=axis)
def _gelu(x):
    return torch.nn.functional.gelu(x, approximate="tanh")
def _silu(x):
    return torch.nn.functional.silu(x)
def _sigmoid(x):
    return torch.sigmoid(x)
def _layernorm(x, axis=-1, eps=1e-5):
    m = x.mean(dim=axis, keepdim=True)
    v = x.var(dim=axis, keepdim=True, unbiased=False)
    return (x - m) / torch.sqrt(v + eps)
def _scatter_add(tgt, idx, src, axis=0):
    return tgt.clone().index_add_(axis, idx, src)
def _segment_sum(src, seg, n):
    out = torch.zeros((n,) + src.shape[1:], dtype=src.dtype)
    return out.index_add_(0, seg, src)
def _pad(x, pw):
    flat = tuple(v for pair in reversed(pw) for v in pair)
    return torch.nn.functional.pad(x, flat)

kernel_name = 'standalone__winograd__vision'

def setup_inputs():

    _w = (lambda a: (lambda t: t.to(torch.bfloat16) if t.is_floating_point() else t)(torch.as_tensor(a)))
    H = W = 384 // 2 * 2
    C = 96
    return {
        "x": _w((lambda *s: torch.randn(*s, dtype=torch.bfloat16) * 0.05)(1, H, W, C)),
        "w": _w((lambda *s: torch.randn(*s, dtype=torch.bfloat16) * 0.05)(3, 3, C, C)),
    }

def reference(x, w):
    N, H, W, C = x.shape
    K = w.shape[-1]
    G  = torch.as_tensor([[1.0,0.0,0.0],[0.5,0.5,0.5],[0.5,-0.5,0.5],[0.0,0.0,1.0]], dtype=x.dtype)
    Bt = torch.as_tensor([[1.0,0.0,-1.0,0.0],[0.0,1.0,1.0,0.0],[0.0,-1.0,1.0,0.0],[0.0,1.0,0.0,-1.0]], dtype=x.dtype)
    At = torch.as_tensor([[1.0,1.0,1.0,0.0],[0.0,1.0,-1.0,-1.0]], dtype=x.dtype)
    U = torch.einsum("ar,rsck,bs->abck", G, w, G)
    xp = _pad(x, ((0,0),(1,1),(1,1),(0,0)))
    nH, nW = H // 2, W // 2
    patches = []
    for i in range(4):
        for j in range(4):
            patches.append(xp[:, i:i + 2 * nH:2, j:j + 2 * nW:2, :])
    d = torch.stack(patches).reshape(4, 4, N * nH * nW, C)
    V = torch.einsum("ai,ijpc,bj->abpc", Bt, d, Bt)
    M = torch.einsum("abck,abpc->abpk", U, V)
    Y = torch.einsum("ma,abpk,nb->pmnk", At, M, At)
    Y = Y.reshape(N, nH, nW, 2, 2, K)
    Y = (lambda x, *d: x.permute(*d))(Y, 0, 1, 3, 2, 4, 5).reshape(N, H, W, K)
    return Y
```

```python
import re
NAME = "standalone__winograd__vision_kernel"
HEADER = """; Kernarg layout for this problem (40 bytes, ptrs only, base s[0:1]):
; @launch grid=({grid},1,1) block=({block},1,1) lds={lds}
{comment}
.amdgcn_target "amdgcn-amd-amdhsa--gfx950"
.text
.globl standalone__winograd__vision_kernel
.p2align 8
.type standalone__winograd__vision_kernel,@function
standalone__winograd__vision_kernel:
"""
FOOTER = """
.section .rodata,"a"
.p2align 6
.amdhsa_kernel standalone__winograd__vision_kernel
  .amdhsa_next_free_vgpr {nv}
  .amdhsa_next_free_sgpr {ns}
  .amdhsa_accum_offset {acc}
  .amdhsa_group_segment_fixed_size 0
  .amdhsa_kernarg_size 40
  .amdhsa_user_sgpr_count 2
  .amdhsa_user_sgpr_kernarg_segment_ptr 1
  .amdhsa_system_sgpr_workgroup_id_x 1
{extra}.end_amdhsa_kernel
"""
class Prog:
    def __init__(s): s.ops = []
    def i(s, t):
        for l in t.split("\n"):
            if l.strip(): s.ops.append(('i', l.strip()))
    def vm(s, t, tag=None): s.ops.append(('vm', t, tag))
    def lg(s, t, tag=None): s.ops.append(('lg', t, tag))
    def wv(s, *tags): s.ops.append(('wv', tags))
    def wl(s, *tags): s.ops.append(('wl', tags))
    def ext(s, ops): s.ops.extend(ops)
    def text(s):
        out = []; vq = []; lq = []
        for op in s.ops:
            k = op[0]
            if k == 'i': out.append(op[1])
            elif k == 'vm': out.append(op[1]); vq.append(op[2])
            elif k == 'lg': out.append(op[1]); lq.append(op[2])
            else:
                q = vq if k == 'wv' else lq
                idx = [n for n, t in enumerate(q) if t in op[1]]
                if not idx: continue
                n = len(q) - 1 - idx[-1]
                mx = 63 if k == 'wv' else 15
                n = min(n, mx)
                out.append("s_waitcnt %s(%d)" % ('vmcnt' if k == 'wv' else 'lgkmcnt', n))
                del q[:len(q) - n]
        return "\n".join(("" if l.endswith(":") or l.startswith(".") else "    ") + l for l in out)
class Sched:
    def __init__(s, mf): s.mf = mf; s.f = [[] for _ in range(len(mf) + 1)]; s.pre = []
    def put(s, pos, *ops):
        assert 0 <= pos < len(s.mf), pos
        s.f[pos].extend(ops)
    def ops(s):
        o = list(s.pre)
        for k, m in enumerate(s.mf):
            o.append(('i', m)); o.extend(s.f[k])
        return o
def I(t): return ('i', t)
def VM(t, tag=None): return ('vm', t, tag)
def LG(t, tag=None): return ('lg', t, tag)
def WV(*tags): return ('wv', tags)
def WL(*tags): return ('wl', tags)
def vr(b, n=4): return "v[%d:%d]" % (b, b + n - 1) if n > 1 else "v%d" % b
def ar(b, n=4): return "a[%d:%d]" % (b, b + n - 1) if n > 1 else "a%d" % b
```

```python
import sys
from asmlib import *
NB = 28311552; RB = 73728
ROW = 10240; STG0 = 143360; STGROW = 9472; WBASE = 40960
def gen(stamps=False, stflags="sc0 sc1", order="pts", prefetch=True):
    P = Prog(); e = P.i
    nst = [0]
    def stamp():
        if not stamps: return []
        k = 44 + 4 * nst[0]; nst[0] += 1
        return [I("s_memtime s[%d:%d]" % (k, k + 1)), I("s_memrealtime s[%d:%d]" % (k + 2, k + 3))]
    vX = [1, 2, 3, 4, 5]; vW = [6, 7, 8]; vT = [9, 10, 11]; vA, vB = 12, 13; vS = 14; vR = [15, 16, 17, 18, 19]; vG, vG4 = 20, 21
    WV0 = 28; ACC = [96, 132]; FB = [168, 188]; CV = 208; SD = 228
    def wreg(f): return ar(4 * f) if f < 64 else vr(WV0 + 4 * (f - 64))
    def wreg2(f, u): return ar(4 * f + 2 * u, 2) if f < 64 else vr(WV0 + 4 * (f - 64) + 2 * u, 2)
    e("s_cmp_ge_u32 s2, 256\ns_cbranch_scc1 L_end")
    P.ext(stamp())
    e("s_load_dwordx4 s[4:7], s[0:1], 0\ns_load_dwordx2 s[8:9], s[0:1], 16")
    if stamps: e("s_load_dwordx2 s[10:11], s[0:1], 32")
    if prefetch:
        e("s_getpc_b64 s[40:41]\nL_pc:")
        e("v_lshlrev_b32 v22, 6, v0")
        e("v_min_u32 v23, L_end-L_pc-16384, v22")
        e("v_add_u32 v23, 0x4000, v23")
        P.vm("global_load_dword v24, v22, s[40:41]", "pf")
        P.vm("global_load_dword v25, v23, s[40:41]", "pf")
    e("v_lshrrev_b32 v22, 6, v0\nv_and_b32 v0, 63, v0\nv_readfirstlane_b32 s33, v22")
    e("s_and_b32 s42, s2, 7\ns_lshr_b32 s43, s2, 3")
    e("s_mul_i32 s42, s42, 9216\ns_mul_i32 s38, s43, %d" % (12 * RB))
    e("s_lshr_b32 s32, s33, 1\ns_and_b32 s33, s33, 1")
    e("s_mul_i32 s39, s32, %d\ns_add_u32 s38, s38, s39" % RB)
    e("s_mul_i32 s35, s32, %d\ns_mul_i32 s39, s33, 5120\ns_add_u32 s35, s35, s39" % ROW)
    e("s_mul_i32 s36, s33, 3072")
    e("s_mul_i32 s39, s33, 320\nv_add_u32 v22, s39, v0")
    e("s_sub_u32 s37, s42, 192")
    e("s_cmp_eq_u32 s42, 0\ns_cselect_b32 s3, 12, 0")
    e("s_cmp_eq_u32 s42, %d\ns_cselect_b32 s39, 12, s3" % (7 * 9216))
    e("s_sub_u32 s39, 600, s39\nv_bfrev_b32 v27, 1")
    for m in range(5):
        e("v_mul_u32_u24 v23, 455, v22\nv_add_u32 v23, 455, v23\nv_lshrrev_b32 v23, 15, v23\nv_and_b32 v23, 2, v23")
        e("v_xor_b32 v23, v23, v22\nv_lshl_add_u32 v23, v23, 4, s37")
        e("v_subrev_u32 v26, s3, v22\nv_cmp_gt_u32 vcc, s39, v26")
        e("v_add_u32 v22, 64, v22\ns_nop 0")
        e("v_cndmask_b32 v%d, v27, v23, vcc" % vX[m])
    e("v_lshlrev_b32 v6, 4, v0\nv_xor_b32 v8, 32, v6\nv_lshrrev_b32 v23, 5, v0\nv_lshlrev_b32 v23, 5, v23\nv_xor_b32 v7, v23, v6")
    e("s_waitcnt lgkmcnt(0)")
    e("s_mov_b32 s12, s4\ns_mov_b32 s13, s5\ns_mov_b32 s14, %d\ns_mov_b32 s15, 0x20000" % NB)
    e("s_mov_b32 s16, s4\ns_mov_b32 s17, s5\ns_mov_b32 s19, 0x20000")
    e("s_mov_b32 s20, s6\ns_mov_b32 s21, s7\ns_mov_b32 s22, 165888\ns_mov_b32 s23, 0x20000")
    def xdma(pi):
        o = []
        srd = "s[12:15]"
        if pi == 0:
            o += [I("s_cmp_eq_u32 s38, 0"), I("s_cselect_b32 s18, 0, %d" % NB), I("s_cselect_b32 s34, %d, s38" % RB), I("s_sub_u32 s34, s34, %d" % RB)]
            srd = "s[16:19]"
        elif pi == 6:
            o += [I("s_add_u32 s34, s38, %d" % ((2 * pi - 1) * RB)), I("s_cmp_ge_u32 s34, %d" % NB), I("s_cselect_b32 s18, 0, %d" % NB), I("s_cselect_b32 s34, 0, s34")]
            srd = "s[16:19]"
        else:
            o += [I("s_add_u32 s34, s38, %d" % ((2 * pi - 1) * RB))]
        groups = []
        for m in range(5):
            g = [I("s_add_u32 m0, s35, %d" % (2 * pi * ROW + 1024 * m)), I("s_nop 0"), VM("buffer_load_dwordx4 v%d, %s, s34 offen lds" % (vX[m], srd), "x%d" % pi)]
            groups.append(g)
        return o, groups
    def src(g):
        g = min(g, 26); r, kc, s = g // 9, (g // 3) % 3, g % 3
        return (r * 3 + s) * 18432 + kc * 6144
    def slot(g):
        if g <= 8: return 11 + g
        if g <= 19: return g - 9
        return g - 9
    def wdma(u):
        g0, g1 = 2 * u, 2 * u + 1
        o = [I("s_mul_i32 s37, s32, %d" % (src(g1) - src(g0))), I("s_mul_i32 s39, s32, %d" % (6144 * (slot(g1) - slot(g0)))),
             I("s_add_u32 s37, s37, s36"), I("s_add_u32 s39, s39, s36"),
             I("s_add_u32 m0, s39, %d" % (WBASE + 6144 * slot(g0))), I("s_add_u32 s37, s37, %d" % src(g0))]
        lds = [VM("buffer_load_dwordx4 v%d, s[20:23], s37 offen offset:%d lds" % (vW[m], 1024 * m), "u%d" % u) for m in range(3)]
        return o, lds
    def emit_x(pi):
        o, gs = xdma(pi); P.ext(o)
        for g in gs: P.ext(g)
    def emit_w(u):
        o, l = wdma(u); P.ext(o); P.ext(l)
    emit_x(0)
    for u in range(5): emit_w(u)
    emit_x(1)
    for u in range(5, 10): emit_w(u)
    e("s_mov_b32 s24, s8\ns_mov_b32 s25, s9\ns_mov_b32 s26, %d\ns_mov_b32 s27, 0x20000" % NB)
    if stamps: e("s_mov_b32 s28, s10\ns_mov_b32 s29, s11\ns_mov_b32 s30, 0x100000\ns_mov_b32 s31, 0x20000")
    e("v_and_b32 v22, 15, v0\nv_lshrrev_b32 v23, 4, v0")
    e("v_lshrrev_b32 v26, 2, v22\nv_lshl_add_u32 v26, v23, 3, v26\nv_mul_u32_u24 v26, 192, v26")
    e("v_and_b32 v27, 3, v22\nv_lshl_add_u32 v26, v27, 3, v26")
    e("v_and_b32 v27, 1, v23\nv_lshlrev_b32 v27, 5, v27")
    e("s_mul_i32 s39, s33, 96")
    for t in range(3):
        e("s_add_u32 s37, s39, %d\nv_xor_b32 v%d, s37, v27\nv_add_u32 v%d, v%d, v26" % (32 * t, vT[t], vT[t], vT[t]))
    e("v_mul_u32_u24 v26, 576, v22\ns_mul_i32 s39, s32, %d\nv_add_u32 v26, s39, v26" % ROW)
    e("v_lshrrev_b32 v27, 1, v22\nv_and_b32 v27, 2, v27\nv_xor_b32 v27, v27, v23\nv_lshl_add_u32 v%d, v27, 4, v26" % vA)
    e("v_add_u32 v27, 1, v22\nv_lshrrev_b32 v27, 1, v27\nv_and_b32 v27, 2, v27\nv_xor_b32 v27, v27, v23\nv_lshl_add_u32 v%d, v27, 4, v26" % vB)
    e("s_mul_i32 s39, s32, %d\ns_mul_i32 s37, s33, 96\ns_add_u32 s39, s39, %d\ns_add_u32 s37, s37, s39" % (STGROW, STG0))
    e("v_mul_u32_u24 v26, 592, v22\nv_lshl_add_u32 v26, v23, 3, v26\nv_add_u32 v%d, s37, v26" % vS)
    e("s_mul_i32 s37, s33, 288\nv_add_u32 v22, s37, v0")
    e("v_lshl_add_u32 v%d, v22, 4, s42" % vG)
    e("v_add_u32 v26, 4096, v%d\nv_bfrev_b32 v27, 1\nv_cmp_gt_u32 vcc, 32, v0\ns_nop 1\nv_cndmask_b32 v%d, v27, v26, vcc" % (vG, vG4))
    for m in range(5):
        if m == 4: e("v_min_u32 v22, 575, v22")
        e("v_mul_u32_u24 v23, 1821, v22\nv_lshrrev_b32 v23, 16, v23\nv_add_u32 v23, v23, v22\nv_lshl_add_u32 v%d, v23, 4, s39\nv_add_u32 v22, 64, v22" % vR[m])
    trbias = [0]
    def trreads(G):
        ops = []
        for s in range(3):
            g = 3 * G + s; base = WBASE + 6144 * slot(g)
            pre = []
            if not (0 <= base - trbias[0] and base + 768 - trbias[0] <= 65535):
                nb = base - 6144 * 2 if slot(g) >= 11 else WBASE
                nb = base
                pre = [I("v_add_u32 v%d, %d, v%d" % (vT[t], (nb - trbias[0]) & 0xffffffff, vT[t])) for t in range(3)]
                trbias[0] = nb
            for t in range(3):
                for u in range(2):
                    ops.append(pre + [LG("ds_read_b64_tr_b16 %s, v%d offset:%d" % (wreg2(3 * g + t, u), vT[t], base - trbias[0] + 768 * u), "w%d" % G)]); pre = []
        return ops
    def fragreads(it, G):
        r, kc = (G % 9) // 3, G % 3
        extra = 2 * ROW if G == 9 else 0
        b = FB[(9 * it + G) % 2]
        return [LG("ds_read_b128 %s, v%d offset:%d" % (vr(b + 4 * p), vA if p < 3 else vB, extra + r * ROW + 192 * p + 64 * kc), "f%d" % (9 * it + G)) for p in range(5)]
    def mfmas(it):
        M = []
        for G in range(9):
            b = FB[(9 * it + G) % 2]
            if order == "pts": seq = [(p, t, s) for p in range(3) for t in range(3) for s in range(3)]
            elif order == "stp": seq = [(p, t, s) for s in range(3) for t in range(3) for p in range(3)]
            else: seq = sorted([(p, t, s) for s in range(3) for t in range(3) for p in range(3)], key=lambda x: (x[0] + x[2], x[2], x[1]))
            seen = set()
            for p, t, s in seq:
                a = ACC[it % 2] + 4 * (3 * p + t)
                c = "0" if (G == 0 and (p, t) not in seen) else vr(a)
                seen.add((p, t))
                M.append("v_mfma_f32_16x16x32_bf16 %s, %s, %s, %s" % (vr(a), wreg(3 * (3 * G + s) + t), vr(b + 4 * (p + s)), c))
        return M
    def epi_ops(it):
        A = ACC[it % 2]
        cv = []
        for k in range(9):
            cv.append([I("v_cvt_pk_bf16_f32 v%d, v%d, v%d" % (CV + 2 * k, A + 4 * k, A + 4 * k + 1)), I("v_cvt_pk_bf16_f32 v%d, v%d, v%d" % (CV + 2 * k + 1, A + 4 * k + 2, A + 4 * k + 3))])
        off = lambda k: 24 * (k // 3) + 4 * (k % 3)
        wr = [LG("ds_write2_b64 v%d, %s, %s offset0:%d offset1:%d" % (vS, vr(CV + 4 * k, 2), vr(CV + 4 * k + 2, 2), off(2 * k), off(2 * k + 1)), "sw%d" % it) for k in range(4)]
        wr.append(LG("ds_write_b64 v%d, %s offset:%d" % (vS, vr(CV + 16, 2), 8 * off(8)), "sw%d" % it))
        rd = [LG("ds_read_b128 %s, v%d" % (vr(SD + 4 * m), vR[m]), "sr%d_%d" % (it, m)) for m in range(5)]
        st = [VM("buffer_store_dwordx4 %s, v%d, s[24:27], s3 offen offset:%d %s" % (vr(SD + 4 * m), vG, 1024 * m, stflags), "st") for m in range(4)]
        st.append(VM("buffer_store_dwordx4 %s, v%d, s[24:27], s3 offen %s" % (vr(SD + 16), vG4, stflags), "st"))
        d = -STG0 if it % 2 == 0 else STG0
        flip = [I("v_add_u32 v%d, %d, v%d" % (x, d & 0xffffffff, x)) for x in [vS] + vR]
        return cv, wr, rd, st, flip
    P.wv("x0", "u0", "u1"); e("s_barrier")
    P.ext(stamp())
    for o in trreads(0): P.ext(o)
    P.ext(fragreads(0, 0))
    need_u = lambda G: "u%d" % ((3 * G + 2) // 2)
    for it in range(6):
        S = Sched(mfmas(it))
        for G in range(9):
            base = 27 * G
            head = [WL("w%d" % G, "f%d" % (9 * it + G))]
            if it == 0 and G < 8:
                tags = [need_u(G + 1)] + (["x1"] if G + 1 >= 3 else [])
                head += [WV(*tags), I("s_barrier")]
            if it == 0 and G == 8: head += [I("s_barrier")]
            if G == 0: S.pre.extend(head)
            else: S.put(base - 1, *head)
            k = base
            if not (it == 5 and G == 8):
                fr = fragreads(it, G + 1)
                start = base + (0 if it == 0 else 12)
                for n, o in enumerate(fr): S.put(start + n, o)
                k = base + 5
            if it == 0 and G < 8:
                for n, o in enumerate(trreads(G + 1)): S.put(k + n, *o)
        S.put(242 - 27 + 20, I("v_add_u32 v%d, %d, v%d" % (vA, 2 * ROW, vA)), I("v_add_u32 v%d, %d, v%d" % (vB, 2 * ROW, vB)))
        if it == 0:
            pos = 2 * 27 + 23
            for u in range(10, 14):
                o, l = wdma(u)
                p0 = 54 + 6 * (u - 10)
                S.put(p0, *o[:3]); S.put(p0 + 1, *o[3:])
                for n, x in enumerate(l): S.put(p0 + 2 + n, x)
            o, gs = xdma(2)
            S.put(4 * 27 + 1, *o)
            for n, g in enumerate(gs): S.put(4 * 27 + 2 + 4 * n, *g)
        else:
            cv, wr, rd, st, flip = epi_ops(it - 1)
            for k in range(9): S.put(3 + k, *cv[k])
            for k, o in enumerate(wr): S.put(20 + 2 * k, o)
            S.put(36, WL("sw%d" % (it - 1)), WV("x%d" % (it + 1)), I("s_barrier"))
            S.put(37, I("s_add_u32 s3, s38, %d" % (2 * (it - 1) * RB)))
            for m, o in enumerate(rd): S.put(45 + m, o)
            for m, o in enumerate(st): S.put(58 + 4 * m, WL("sr%d_%d" % (it - 1, m)), o)
            for n, o in enumerate(flip): S.put(80 + n, o)
            pis = {1: [3, 4], 2: [5], 3: [6]}.get(it, [])
            p0 = 90
            for pi in pis:
                o, gs = xdma(pi)
                S.put(p0, *o)
                for n, g in enumerate(gs): S.put(p0 + 2 + 5 * n, *g)
                p0 += 30
        if stamps: S.put(242, *stamp())
        P.ext(S.ops())
    cv, wr, rd, st, flip = epi_ops(5)
    e("s_add_u32 s3, s38, %d" % (10 * RB))
    for k in range(8): P.ext(cv[k])
    P.ext(wr[:4]); P.ext(cv[8]); P.ext(wr[4:])
    P.wl("sw5"); e("s_barrier")
    P.ext(rd)
    for m, o in enumerate(st): P.wl("sr5_%d" % m); P.ext([o])
    if stamps:
        P.ext(stamp())
        e("s_waitcnt vmcnt(0)"); P.ext(stamp())
        e("s_waitcnt lgkmcnt(0)\ns_or_b32 s3, s32, s33\ns_cmp_lg_u32 s3, 0\ns_cbranch_scc1 L_end")
        e("s_lshl_b32 s3, s2, 8\nv_mov_b32 v1, s3")
        for i in range(nst[0]):
            for j in range(4): e("v_mov_b32 v%d, s%d" % (4 + j, 44 + 4 * i + j))
            e("buffer_store_dwordx4 v[4:7], v1, s[28:31], 0 offen offset:%d\ns_nop 1" % (16 * i))
    e("L_end:\ns_endpgm")
    txt = HEADER.format(grid=256, block=256, lds=163840, comment="; direct 3x3 convolution on MFMA") + P.text() + FOOTER.format(nv=512, ns=96, acc=256, extra="")
    return txt, nst[0]
if __name__ == "__main__":
    sys.path.insert(0, "bench")
    from build import build
    import json
    out = []
    def mk(name, **kw):
        t, n = gen(**kw); open("bench/%s.s" % name, "w").write(t); build("bench/%s.s" % name, "bench/%s.co" % name)
        out.append("%s.co:256:256:163840:%d" % (name, n))
    mk("d1"); mk("d1_st", stamps=True)
    open("args.txt", "w").write(" ".join(out))
    print(json.dumps(["bench/run_host", "bench/args.txt"] + ["bench/" + x.split(":")[0] for x in out]))
```

```python
import sys
from asmlib import *
NB = 28311552; RB = 73728
ROW = 10240; STG0 = 143360; STGROW = 9472; WBASE = 40960
def gen(stamps=False, stflags="sc0 sc1", order="pts", prefetch=True, dbg=False):
    P = Prog(); e = P.i
    nst = [0]
    def stamp():
        if not stamps: return []
        k = 44 + 4 * nst[0]; nst[0] += 1
        return [I("s_memtime s[%d:%d]" % (k, k + 1)), I("s_memrealtime s[%d:%d]" % (k + 2, k + 3))]
    vX = [1, 2, 3, 4, 5]; vW = [6, 7, 8]; vT = [9, 10, 11]; vA, vB = 12, 13; vS = 14; vR = [15, 16, 17, 18, 19]; vG, vG4 = 20, 21
    WV0 = 28; ACC = [96, 132]; FB = [168, 188]; CV = 208; SD = 228
    def wreg(f): return ar(4 * f) if f < 64 else vr(WV0 + 4 * (f - 64))
    def wreg2(f, u): return ar(4 * f + 2 * u, 2) if f < 64 else vr(WV0 + 4 * (f - 64) + 2 * u, 2)
    e("s_cmp_ge_u32 s2, 256\ns_cbranch_scc1 L_end")
    P.ext(stamp())
    e("s_load_dwordx4 s[4:7], s[0:1], 0\ns_load_dwordx2 s[8:9], s[0:1], 16")
    if stamps: e("s_load_dwordx2 s[10:11], s[0:1], %d" % (24 if dbg else 32))
    if prefetch:
        e("s_getpc_b64 s[40:41]\nL_pc:")
        e("v_lshlrev_b32 v22, 6, v0")
        e("v_min_u32 v23, L_end-L_pc-16384, v22")
        e("v_add_u32 v23, 0x4000, v23")
        P.vm("global_load_dword v24, v22, s[40:41]", "pf")
        P.vm("global_load_dword v25, v23, s[40:41]", "pf")
    e("v_lshrrev_b32 v22, 6, v0\nv_and_b32 v0, 63, v0\nv_readfirstlane_b32 s33, v22")
    e("s_and_b32 s42, s2, 7\ns_lshr_b32 s43, s2, 3")
    e("s_mul_i32 s42, s42, 9216\ns_mul_i32 s38, s43, %d" % (12 * RB))
    e("s_lshr_b32 s32, s33, 1\ns_and_b32 s33, s33, 1")
    e("s_mul_i32 s39, s32, %d\ns_add_u32 s38, s38, s39" % RB)
    e("s_mul_i32 s35, s32, %d\ns_mul_i32 s39, s33, 5120\ns_add_u32 s35, s35, s39" % ROW)
    e("s_mul_i32 s36, s33, 3072")
    e("s_mul_i32 s39, s33, 320\nv_add_u32 v22, s39, v0")
    e("s_sub_u32 s37, s42, 192")
    e("s_cmp_eq_u32 s42, 0\ns_cselect_b32 s3, 12, 0")
    e("s_cmp_eq_u32 s42, %d\ns_cselect_b32 s39, 12, s3" % (7 * 9216))
    e("s_sub_u32 s39, 600, s39\nv_bfrev_b32 v27, 1")
    for m in range(5):
        e("v_mul_u32_u24 v23, 455, v22\nv_add_u32 v23, 455, v23\nv_lshrrev_b32 v23, 15, v23\nv_and_b32 v23, 2, v23")
        e("v_xor_b32 v23, v23, v22\nv_lshl_add_u32 v23, v23, 4, s37")
        e("v_subrev_u32 v26, s3, v22\nv_cmp_gt_u32 vcc, s39, v26")
        e("v_add_u32 v22, 64, v22\ns_nop 0")
        e("v_cndmask_b32 v%d, v27, v23, vcc" % vX[m])
    e("v_lshlrev_b32 v6, 4, v0\nv_xor_b32 v8, 32, v6\nv_lshrrev_b32 v23, 5, v0\nv_lshlrev_b32 v23, 5, v23\nv_xor_b32 v7, v23, v6")
    e("s_waitcnt lgkmcnt(0)")
    e("s_mov_b32 s12, s4\ns_mov_b32 s13, s5\ns_mov_b32 s14, %d\ns_mov_b32 s15, 0x20000" % NB)
    e("s_mov_b32 s16, s4\ns_mov_b32 s17, s5\ns_mov_b32 s19, 0x20000")
    e("s_mov_b32 s20, s6\ns_mov_b32 s21, s7\ns_mov_b32 s22, 165888\ns_mov_b32 s23, 0x20000")
    def xdma(pi):
        o = []
        srd = "s[12:15]"
        if pi == 0:
            o += [I("s_cmp_eq_u32 s38, 0"), I("s_cselect_b32 s18, 0, %d" % NB), I("s_cselect_b32 s34, %d, s38" % RB), I("s_sub_u32 s34, s34, %d" % RB)]
            srd = "s[16:19]"
        elif pi == 6:
            o += [I("s_add_u32 s34, s38, %d" % ((2 * pi - 1) * RB)), I("s_cmp_ge_u32 s34, %d" % NB), I("s_cselect_b32 s18, 0, %d" % NB), I("s_cselect_b32 s34, 0, s34")]
            srd = "s[16:19]"
        else:
            o += [I("s_add_u32 s34, s38, %d" % ((2 * pi - 1) * RB))]
        groups = []
        for m in range(5):
            g = [I("s_add_u32 m0, s35, %d" % (2 * pi * ROW + 1024 * m)), I("s_nop 0"), VM("buffer_load_dwordx4 v%d, %s, s34 offen lds" % (vX[m], srd), "x%d" % pi)]
            groups.append(g)
        return o, groups
    def src(g):
        g = min(g, 26); r, kc, s = g // 9, (g // 3) % 3, g % 3
        return (r * 3 + s) * 18432 + kc * 6144
    def slot(g):
        if g <= 8: return 11 + g
        if g <= 19: return g - 9
        return g - 9
    def wdma(u):
        g0, g1 = 2 * u, 2 * u + 1
        o = [I("s_mul_i32 s37, s32, %d" % (src(g1) - src(g0))), I("s_mul_i32 s39, s32, %d" % (6144 * (slot(g1) - slot(g0)))),
             I("s_add_u32 s37, s37, s36"), I("s_add_u32 s39, s39, s36"),
             I("s_add_u32 m0, s39, %d" % (WBASE + 6144 * slot(g0))), I("s_add_u32 s37, s37, %d" % src(g0))]
        lds = [VM("buffer_load_dwordx4 v%d, s[20:23], s37 offen offset:%d lds" % (vW[m], 1024 * m), "u%d" % u) for m in range(3)]
        return o, lds
    def emit_x(pi):
        o, gs = xdma(pi); P.ext(o)
        for g in gs: P.ext(g)
    def emit_w(u):
        o, l = wdma(u); P.ext(o); P.ext(l)
    emit_x(0)
    for u in range(5): emit_w(u)
    emit_x(1)
    for u in range(5, 10): emit_w(u)
    e("s_mov_b32 s24, s8\ns_mov_b32 s25, s9\ns_mov_b32 s26, %d\ns_mov_b32 s27, 0x20000" % NB)
    if stamps: e("s_mov_b32 s28, s10\ns_mov_b32 s29, s11\ns_mov_b32 s30, %d\ns_mov_b32 s31, 0x20000" % (256 if dbg else 0x100000))
    e("v_and_b32 v22, 15, v0\nv_lshrrev_b32 v23, 4, v0")
    e("v_lshrrev_b32 v26, 2, v22\nv_lshl_add_u32 v26, v23, 3, v26\nv_mul_u32_u24 v26, 192, v26")
    e("v_and_b32 v27, 3, v22\nv_lshl_add_u32 v26, v27, 3, v26")
    e("v_and_b32 v27, 1, v23\nv_lshlrev_b32 v27, 5, v27")
    e("s_mul_i32 s39, s33, 96")
    for t in range(3):
        e("s_add_u32 s37, s39, %d\nv_xor_b32 v%d, s37, v27\nv_add_u32 v%d, v%d, v26" % (32 * t, vT[t], vT[t], vT[t]))
    e("v_mul_u32_u24 v26, 576, v22\ns_mul_i32 s39, s32, %d\nv_add_u32 v26, s39, v26" % ROW)
    e("v_lshrrev_b32 v27, 1, v22\nv_and_b32 v27, 2, v27\nv_xor_b32 v27, v27, v23\nv_lshl_add_u32 v%d, v27, 4, v26" % vA)
    e("v_add_u32 v27, 1, v22\nv_lshrrev_b32 v27, 1, v27\nv_and_b32 v27, 2, v27\nv_xor_b32 v27, v27, v23\nv_lshl_add_u32 v%d, v27, 4, v26" % vB)
    e("s_mul_i32 s39, s32, %d\ns_mul_i32 s37, s33, 96\ns_add_u32 s39, s39, %d\ns_add_u32 s37, s37, s39" % (STGROW, STG0))
    e("v_mul_u32_u24 v26, 592, v22\nv_lshl_add_u32 v26, v23, 3, v26\nv_add_u32 v%d, s37, v26" % vS)
    e("s_mul_i32 s37, s33, 288\nv_add_u32 v22, s37, v0")
    e("v_lshl_add_u32 v%d, v22, 4, s42" % vG)
    e("v_add_u32 v26, 4096, v%d\nv_bfrev_b32 v27, 1\nv_cmp_gt_u32 vcc, 32, v0\ns_nop 1\nv_cndmask_b32 v%d, v27, v26, vcc" % (vG, vG4))
    for m in range(5):
        if m == 4: e("v_min_u32 v22, 575, v22")
        e("v_mul_u32_u24 v23, 1821, v22\nv_lshrrev_b32 v23, 16, v23\nv_add_u32 v23, v23, v22\nv_lshl_add_u32 v%d, v23, 4, s39\nv_add_u32 v22, 64, v22" % vR[m])
    trbias = [0]
    def trreads(G):
        ops = []
        for s in range(3):
            g = 3 * G + s; base = WBASE + 6144 * slot(g)
            pre = []
            if not (0 <= base - trbias[0] and base + 768 - trbias[0] <= 65535):
                nb = base - 6144 * 2 if slot(g) >= 11 else WBASE
                nb = base
                pre = [I("v_add_u32 v%d, %d, v%d" % (vT[t], (nb - trbias[0]) & 0xffffffff, vT[t])) for t in range(3)]
                trbias[0] = nb
            for t in range(3):
                for u in range(2):
                    ops.append(pre + [LG("ds_read_b64_tr_b16 %s, v%d offset:%d" % (wreg2(3 * g + t, u), vT[t], base - trbias[0] + 768 * u), "w%d" % G)]); pre = []
        return ops
    def fragreads(it, G):
        r, kc = (G % 9) // 3, G % 3
        extra = 2 * ROW if G == 9 else 0
        b = FB[(9 * it + G) % 2]
        return [LG("ds_read_b128 %s, v%d offset:%d" % (vr(b + 4 * p), vA if p < 3 else vB, extra + r * ROW + 192 * p + 64 * kc), "f%d" % (9 * it + G)) for p in range(5)]
    def mfmas(it):
        M = []
        for G in range(9):
            b = FB[(9 * it + G) % 2]
            if order == "pts": seq = [(p, t, s) for p in range(3) for t in range(3) for s in range(3)]
            elif order == "stp": seq = [(p, t, s) for s in range(3) for t in range(3) for p in range(3)]
            else: seq = sorted([(p, t, s) for s in range(3) for t in range(3) for p in range(3)], key=lambda x: (x[0] + x[2], x[2], x[1]))
            seen = set()
            for p, t, s in seq:
                a = ACC[it % 2] + 4 * (3 * p + t)
                c = "0" if (G == 0 and (p, t) not in seen) else vr(a)
                seen.add((p, t))
                M.append("v_mfma_f32_16x16x32_bf16 %s, %s, %s, %s" % (vr(a), wreg(3 * (3 * G + s) + t), vr(b + 4 * (p + s)), c))
        return M
    def epi_ops(it):
        A = ACC[it % 2]
        cv = []
        for k in range(9):
            cv.append([I("v_cvt_pk_bf16_f32 v%d, v%d, v%d" % (CV + 2 * k, A + 4 * k, A + 4 * k + 1)), I("v_cvt_pk_bf16_f32 v%d, v%d, v%d" % (CV + 2 * k + 1, A + 4 * k + 2, A + 4 * k + 3))])
        off = lambda k: 24 * (k // 3) + 4 * (k % 3)
        wr = [LG("ds_write2_b64 v%d, %s, %s offset0:%d offset1:%d" % (vS, vr(CV + 4 * k, 2), vr(CV + 4 * k + 2, 2), off(2 * k), off(2 * k + 1)), "sw%d" % it) for k in range(4)]
        wr.append(LG("ds_write_b64 v%d, %s offset:%d" % (vS, vr(CV + 16, 2), 8 * off(8)), "sw%d" % it))
        rd = [LG("ds_read_b128 %s, v%d" % (vr(SD + 4 * m), vR[m]), "sr%d_%d" % (it, m)) for m in range(5)]
        st = [VM("buffer_store_dwordx4 %s, v%d, s[24:27], s3 offen offset:%d %s" % (vr(SD + 4 * m), vG, 1024 * m, stflags), "st") for m in range(4)]
        st.append(VM("buffer_store_dwordx4 %s, v%d, s[24:27], s3 offen %s" % (vr(SD + 16), vG4, stflags), "st"))
        d = -STG0 if it % 2 == 0 else STG0
        flip = [I("v_add_u32 v%d, %d, v%d" % (x, d & 0xffffffff, x)) for x in [vS] + vR]
        return cv, wr, rd, st, flip
    P.wv("x0", "u0", "u1"); e("s_barrier")
    P.ext(stamp())
    for o in trreads(0): P.ext(o)
    P.ext(fragreads(0, 0))
    need_u = lambda G: "u%d" % ((3 * G + 2) // 2)
    for it in range(6):
        S = Sched(mfmas(it))
        for G in range(9):
            base = 27 * G
            head = [WL("w%d" % G, "f%d" % (9 * it + G))]
            if it == 0 and G < 8:
                tags = [need_u(G + 1)] + (["x1"] if G + 1 >= 3 else [])
                head += [WV(*tags), I("s_barrier")]
            if it == 0 and G == 8: head += [I("s_barrier")]
            if G == 0: S.pre.extend(head)
            else: S.put(base - 1, *head)
            k = base
            if not (it == 5 and G == 8):
                fr = fragreads(it, G + 1)
                start = base + (0 if it == 0 else 12)
                for n, o in enumerate(fr): S.put(start + n, o)
                k = base + 5
            if it == 0 and G < 8:
                for n, o in enumerate(trreads(G + 1)): S.put(k + n, *o)
        S.put(242 - 27 + 20, I("v_add_u32 v%d, %d, v%d" % (vA, 2 * ROW, vA)), I("v_add_u32 v%d, %d, v%d" % (vB, 2 * ROW, vB)))
        if it == 0:
            pos = 2 * 27 + 23
            for u in range(10, 14):
                o, l = wdma(u)
                p0 = 54 + 6 * (u - 10)
                S.put(p0, *o[:3]); S.put(p0 + 1, *o[3:])
                for n, x in enumerate(l): S.put(p0 + 2 + n, x)
            o, gs = xdma(2)
            S.put(4 * 27 + 1, *o)
            for n, g in enumerate(gs): S.put(4 * 27 + 2 + 4 * n, *g)
        else:
            cv, wr, rd, st, flip = epi_ops(it - 1)
            for k in range(9): S.put(3 + k, *cv[k])
            for k, o in enumerate(wr): S.put(20 + 2 * k, o)
            S.put(36, WL("sw%d" % (it - 1)), WV("x%d" % (it + 1)), I("s_barrier"))
            S.put(37, I("s_add_u32 s3, s38, %d" % (2 * (it - 1) * RB)))
            for m, o in enumerate(rd): S.put(45 + m, o)
            for m, o in enumerate(st): S.put(58 + 4 * m, WL("sr%d_%d" % (it - 1, m)), o)
            for n, o in enumerate(flip): S.put(80 + n, o)
            pis = {1: [3, 4], 2: [5], 3: [6]}.get(it, [])
            p0 = 90
            for pi in pis:
                o, gs = xdma(pi)
                S.put(p0, *o)
                for n, g in enumerate(gs): S.put(p0 + 2 + 5 * n, *g)
                p0 += 30
        if stamps: S.put(242, *stamp())
        P.ext(S.ops())
    cv, wr, rd, st, flip = epi_ops(5)
    e("s_add_u32 s3, s38, %d" % (10 * RB))
    for k in range(8): P.ext(cv[k])
    P.ext(wr[:4]); P.ext(cv[8]); P.ext(wr[4:])
    P.wl("sw5"); e("s_barrier")
    P.ext(rd)
    for m, o in enumerate(st): P.wl("sr5_%d" % m); P.ext([o])
    if stamps:
        P.ext(stamp())
        e("s_waitcnt vmcnt(0)"); P.ext(stamp())
        e("s_waitcnt lgkmcnt(0)\ns_or_b32 s3, s32, s33\ns_cmp_lg_u32 s3, 0\ns_cbranch_scc1 L_end")
        if dbg:
            last = 44 + 4 * (nst[0] - 1)
            e("s_mov_b64 exec, 1\nv_mov_b32 v1, 0\ns_not_b32 s3, s46\nv_mov_b32 v2, s3\nv_mov_b32 v3, s%d" % (last + 2))
            e("buffer_atomic_umax v2, v1, s[28:31], 0 offen\nbuffer_atomic_umax v3, v1, s[28:31], 0 offen offset:4")
            e("s_cmp_lg_u32 s2, 100\ns_cbranch_scc1 L_end")
            for i in range(1, nst[0]):
                e("s_sub_u32 s3, s%d, s46\nv_mov_b32 v2, s3\nbuffer_store_dword v2, v1, s[28:31], 0 offen offset:%d\ns_nop 1" % (46 + 4 * i, 4 + 4 * i))
            e("s_sub_u32 s3, s%d, s44\nv_mov_b32 v2, s3\nbuffer_store_dword v2, v1, s[28:31], 0 offen offset:60\ns_nop 1" % last)
            e("s_branch L_end")
        e("s_lshl_b32 s3, s2, 8\nv_mov_b32 v1, s3")
        for i in range(nst[0]):
            for j in range(4): e("v_mov_b32 v%d, s%d" % (4 + j, 44 + 4 * i + j))
            e("buffer_store_dwordx4 v[4:7], v1, s[28:31], 0 offen offset:%d\ns_nop 1" % (16 * i))
    e("L_end:\ns_endpgm")
    txt = HEADER.format(grid=256, block=256, lds=163840, comment="; direct 3x3 convolution on MFMA") + P.text() + FOOTER.format(nv=512, ns=96, acc=256, extra="")
    return txt, nst[0]
if __name__ == "__main__":
    sys.path.insert(0, "bench")
    from build import build
    import json
    out = []
    def mk(name, **kw):
        t, n = gen(**kw); open("bench/%s.s" % name, "w").write(t); build("bench/%s.s" % name, "bench/%s.co" % name)
        out.append("%s.co:256:256:163840:%d" % (name, n))
    mk("d1"); mk("d1_st", stamps=True); mk("d1_dbg", stamps=True, dbg=True)
    open("args.txt", "w").write(" ".join(out))
    print(json.dumps(["bench/run_host", "bench/args.txt"] + ["bench/" + x.split(":")[0] for x in out]))
```

```python
import re, sys
def regs(tok):
    tok = tok.strip().lstrip('-')
    m = re.fullmatch(r'([vas])\[(\d+):(\d+)\]', tok)
    if m: return {(m.group(1), i) for i in range(int(m.group(2)), int(m.group(3)) + 1)}
    m = re.fullmatch(r'([vas])(\d+)', tok)
    if m: return {(m.group(1), int(m.group(2)))}
    if tok == 'vcc': return {('s', 'vcc')}
    if tok == 'm0': return {('s', 'm0')}
    return set()
def parse(l):
    op, _, rest = l.partition(' ')
    ts = [t.strip().split(' ')[0] for t in rest.split(',')] if rest else []
    R = [regs(t) for t in ts]
    w, r = set(), set()
    if op.startswith('v_mfma'): w = R[0]; r = R[1] | R[2] | R[3]; return op, w, r, R[3]
    if op.startswith(('ds_write', 'buffer_store')): r = set().union(*R)
    elif op.startswith('buffer_load') and ' lds' in l: r = set().union(*R) | {('s', 'm0')}
    elif op.startswith(('s_cmp', 's_waitcnt', 's_barrier', 's_nop', 's_cbranch', 's_branch', 's_endpgm')): r = set().union(*R) if R else set()
    else:
        w = R[0] if R else set(); r = set().union(*R[1:]) if len(R) > 1 else set()
    return op, w, r, set()
def scan(L, mw=1):
    I = [parse(l) for l in L]
    isv = lambda op: op.startswith('v_') and not op.startswith('v_mfma')
    ismem = lambda op: op.startswith(('ds_', 'buffer_', 'global_'))
    def states(i, j):
        n = 0; prev_m = I[i][0].startswith('v_mfma')
        for k in range(i + 1, j):
            op = I[k][0]
            if op == 's_nop': n += int(L[k].split()[1]) + 1
            elif op.startswith('v_mfma'): n += mw if prev_m else 1; prev_m = True
            else: n += 1
        return n
    out = []
    for j, (op, w, r, c) in enumerate(I):
        for i in range(j - 1, max(j - 24, -1), -1):
            po, pw, pr, pc = I[i]; need = 0; why = ''
            if po.startswith('v_mfma'):
                if (isv(op) or ismem(op)) and pw & (r | w): need, why = 8, 'mfma D -> valu/mem'
                elif op.startswith('v_mfma') and pw & (r - c): need, why = 8, 'mfma D -> A/B'
                elif op.startswith('v_mfma') and pw & c and pw != c: need, why = 6, 'mfma D -> partial C'
                elif isv(op) and pc & w: need, why = 3, 'mfma C -> valu write'
            elif isv(po):
                pv = {x for x in pw if x[0] != 's'}; ps = pw - pv
                if op.startswith('v_mfma') and pv & r: need, why = 2, 'valu -> mfma'
                elif op.startswith('v_readfirstlane') and pv & r: need, why = 1, 'valu -> readfirstlane'
                elif isv(op) and ps & r: need, why = 2, 'valu sgpr -> valu'
                elif ismem(op) and ps & r: need, why = 5, 'valu sgpr -> vmem'
            elif po.startswith('s_') and ('s', 'm0') in pw and ('s', 'm0') in r and ismem(op): need, why = 1, 'm0 -> lds dma'
            elif po.startswith('buffer_store') and pr & w and (isv(op) or ismem(op)): need, why = 2, 'store data war'
            if need and states(i, j) < need: out.append((i, j, need, states(i, j), why))
    return out
def pad(text):
    lines = text.split("\n")
    while True:
        idx = [n for n, l in enumerate(lines) if l.startswith('    ')]
        L = [lines[n].strip() for n in idx]
        v = scan(L)
        if not v: return "\n".join(lines)
        i, j, need, have, why = v[0]
        cand = [k for k in range(i, j) if L[k].startswith('v_mfma')]
        empty = [k for k in cand if L[k + 1].startswith('v_mfma')]
        k = empty[-1] if empty else j - 1
        lines.insert(idx[k] + 1, "    s_nop %d" % (min(need - have, 3) - 1))
if __name__ == "__main__":
    L = [l.strip() for l in open(sys.argv[1]) if l.startswith('    ')]
    v = scan(L, int(sys.argv[2]) if len(sys.argv) > 2 else 1)
    for i, j, need, have, why in v: print("HAZARD %s: need %d have %d | %s | %s" % (why, need, have, L[i], L[j]))
    print("instructions", len(L), "hazards", len(v))
```

```python
import sys
from asmlib import *
import hazcheck
NB = 28311552; RB = 73728
VROW = 9600; VBUF = 38400; EX = 76800; STG = 113664; STGROW = 9472
MF = "v_mfma_f32_16x16x32_bf16"
def gen(stamps=False, only=None, stflags="sc0 sc1", probe=None, fine=None, v0at=9, x2pos=44, verbose=False, plan=None, usepk=True, wmargin=6, wgap=3, rlat=7, slat=10, WB=38400, NS=6, x45a=False, x45='plan', lateaddr=True, t1lo=12, pfine=None, stubs=0, dstep=1, tdelay=0, x1pos=150, ewlo=66, estonly=False, rgap=1, tearly=True, fstep=1, morder='pts', lastpts=True, pos=None, bars=None, midadd=True, x1last=104, km=False, vstep=10, tstride=7, onebar=False, chkpos=48, stlo=8, early=False, pst=False, ilv=False, wpfw=0, tlb=0, palign=False, pwg=100, cpf=True, wpf=True, sstr=7, emajor=0, defer=False, xbpos=56, pkgrp=True, split05=False, xfl='', xfl0=None, strict=True, nodummy=False):
    P = Prog(); e = P.i
    nst = [0]; cnt = [0]
    def stamp():
        if not stamps: return []
        cnt[0] += 1
        if only is not None and cnt[0] - 1 not in only: return []
        k = 44 + 4 * nst[0]; nst[0] += 1
        return [I("s_memtime s[%d:%d]" % (k, k + 1)), I("s_memrealtime s[%d:%d]" % (k + 2, k + 3))]
    vX = [1, 2, 3]; vVw = [[4, 5, 6], [7, 8, 9]]; vF = [[10, 11], [12, 13]]; vEw, vEr = 14, 15
    vS = 16; vR = [17, 18, 19, 20, 21]; vG, vG4 = 22, 23
    AA, AB = 24, 60; RECV = 96; VOUT = 108
    RAWE = [132, 136, 140]; RAWO = [144, 148, 142]; ST0 = 152; U1V = 200; TMP = 248
    U2A = 0; U1A = 108; FB = [168, 188]; SD = 208
    RAW0 = [60, 64, 68]; RAW1 = [72, 76, 70]; vT = 80; vW = [89, 90, 91]; SEL = 96; TM = 24; DD = [(48, 52), (56, 92)]
    sP, sH = 32, 33
    u1loc = {}; nv = na = 0
    for f in range(27):
        if f % 2 == 0 and nv < 12: u1loc[f] = ('v', U1V + 4 * nv); nv += 1
        else: u1loc[f] = ('a', U1A + 4 * na); na += 1
    assert nv == 12 and na == 15
    def u1(f): k, b = u1loc[f]; return (vr if k == 'v' else ar)(b)
    def u2(f): return ar(U2A + 4 * f)
    e("s_cmp_ge_u32 s2, 256\ns_cbranch_scc1 L_end")
    P.ext(stamp())
    e("s_load_dwordx4 s[4:7], s[0:1], 0\ns_load_dwordx2 s[8:9], s[0:1], 16")
    if stamps: e("s_load_dwordx2 s[10:11], s[0:1], 32")
    e("v_lshrrev_b32 v250, 6, v0\nv_and_b32 v0, 63, v0\nv_readfirstlane_b32 s96, v250")
    e("s_and_b32 s42, s2, 7\ns_lshr_b32 s43, s2, 3")
    if cpf:
        e("s_cmp_lg_u32 s96, 3\ns_cbranch_scc1 L_nocpf")
        e("s_getpc_b64 s[40:41]\nL_pc:")
        e("s_and_b32 s3, s43, 3\ns_lshl_b32 s3, s3, 13")
        e("v_lshl_add_u32 v251, v0, 7, s3\nv_min_u32 v251, L_end-L_pc, v251")
        e("global_load_dword v254, v251, s[40:41]")
        e("L_nocpf:")
    e("s_mul_i32 s42, s42, 9216")
    e("s_lshr_b32 s32, s96, 1\ns_and_b32 s33, s96, 1")
    e("s_and_b32 s3, s43, 1\ns_mul_i32 s38, s43, 12\ns_mul_i32 s39, s3, 11\ns_add_u32 s38, s38, s39\ns_mul_i32 s38, s38, %d" % RB)
    e("s_mul_i32 s39, s3, %d\ns_sub_u32 s100, %d, s39" % (2 * RB, RB))
    e("s_mul_i32 s101, s3, %d" % (2 * 55296))
    e("s_sub_u32 s99, 55296, s101")
    e("s_sub_u32 s34, s38, s100")
    e("s_mul_i32 s39, s32, s100\ns_add_u32 s38, s38, s39\ns_lshl_b32 s98, s100, 1")
    e("s_mul_i32 s36, s33, 3072\ns_add_u32 s101, s101, s36")
    e("v_lshlrev_b32 v89, 4, v0\nv_xor_b32 v91, 32, v89\nv_and_b32 v251, 32, v0\nv_xor_b32 v90, v251, v89")
    if nodummy: e("s_lshl_b32 s3, s33, 5\nv_xor_b32 v246, s3, v89")
    def xaddr():
        e("s_mul_i32 s39, s96, 150\nv_add_u32 v250, s39, v0")
        e("s_sub_u32 s37, s42, 192")
        e("s_cmp_eq_u32 s42, 0\ns_cselect_b32 s3, 12, 0")
        e("s_cmp_eq_u32 s42, %d\ns_cselect_b32 s41, 12, s3\ns_sub_u32 s41, 600, s41" % (7 * 9216))
        e("v_bfrev_b32 v253, 1")
        e("v_subrev_u32 v248, 20, v0\nv_cmp_gt_u32 vcc, 44, v0\ns_add_u32 s39, s39, 128\ns_nop 0\nv_cndmask_b32 v248, v248, v0, vcc")
        e("v_and_b32 v249, 1, v248\nv_lshlrev_b32 v249, 3, v249\nv_lshrrev_b32 v248, 1, v248\nv_add_u32 v248, s39, v248")
        for m in range(3):
            n = 250 if m < 2 else 248
            e("v_subrev_u32 v252, s3, v%d\nv_cmp_gt_u32 vcc, s41, v252\nv_lshl_add_u32 v251, v%d, 4, s37" % (n, n))
            if m == 2: e("v_add_u32 v251, v251, v249")
            else: e("s_nop 0")
            e("v_cndmask_b32 v%d, v253, v251, vcc" % vX[m])
            e("v_mul_u32_u24 v251, 455, v%d\nv_add_u32 v251, 455, v251\nv_lshrrev_b32 v251, 15, v251\nv_and_b32 v251, 2, v251\nv_xor_b32 v251, v251, v%d" % (n, n))
            if m == 2: e("v_lshl_add_u32 v%d, v251, 4, v249" % vVw[0][m])
            else: e("v_lshlrev_b32 v%d, 4, v251" % vVw[0][m])
            if m == 0: e("v_add_u32 v250, 64, v250")
    if not early: xaddr()
    e("s_mov_b32 s15, 0x20000\ns_mov_b32 s22, 165888\ns_mov_b32 s23, 0x20000")
    e("s_mul_i32 s39, s32, s99\ns_add_u32 s40, s101, s39\ns_lshl_b32 s3, s99, 1\ns_add_u32 s101, s101, s3\ns_sub_u32 s3, 18432, s3\ns_mul_i32 s3, s3, s32\ns_add_u32 s41, s101, s3")
    e("s_mul_i32 s97, s32, 49152\ns_mul_i32 s35, s32, 6144\ns_add_u32 s35, s35, s36")
    e("s_cmp_ge_u32 s34, %d\ns_cselect_b32 s14, 0, %d\ns_cselect_b32 s39, 0, s34" % (NB, NB))
    e("s_mul_i32 s3, s43, 3121\ns_lshr_b32 s3, s3, 16\ns_mul_i32 s3, s3, 21\ns_sub_u32 s3, s43, s3\ns_lshl_b32 s3, s3, 13\ns_cmp_eq_u32 s96, %d\ns_cselect_b32 s3, s3, 0x40000000\nv_lshl_add_u32 v247, v0, 7, s3" % wpfw)
    if pst: P.ext(stamp())
    e("s_waitcnt lgkmcnt(0)")
    if pst: P.ext(stamp())
    e("s_mov_b32 s12, s4\ns_mov_b32 s13, s5\ns_mov_b32 s20, s6\ns_mov_b32 s21, s7")
    e("s_mov_b32 s4, s40\ns_add_u32 s5, s40, s99\ns_mov_b32 s6, s41\ns_sub_u32 s7, s41, s97\ns_mov_b32 s97, s39")
    TX = "s_mul_i32 s1, s100, 13\ns_add_u32 s1, s1, s34\ns_load_dword s0, s[12:13], s97\ns_load_dword s0, s[12:13], s1"
    TO = "s_mul_i32 s1, s100, 10\ns_add_u32 s1, s1, s38\ns_load_dword s0, s[8:9], s38\ns_load_dword s0, s[8:9], s1"
    if tlb: e(TX)
    if tlb > 1: e(TO)
    WPF = "s_cmp_lg_u32 s96, %d\ns_cbranch_scc1 L_nowpf\nbuffer_load_dword v255, v247, s[20:23], 0 offen\nL_nowpf:" % wpfw
    if wpf and (plan is None or "W" not in plan['a'].split()): e(WPF)
    def scal(kind):
        o = ["s_lshl_b32 s95, s43, 2", "s_add_u32 s95, s95, s96"]
        if kind == "CS":
            o += ["s_lshl_b32 s95, s95, 8", "s_getpc_b64 s[0:1]", "L_pcs:", "s_min_u32 s95, s95, L_end-L_pcs-256"]
            for k in range(256 >> sstr): o += ["s_load_dword s36, s[0:1], s95", "s_add_u32 s95, s95, %d" % (1 << sstr)]
        else:
            o += ["s_mul_i32 s95, s95, 1296", "s_and_b32 s95, s95, 0xffffff80"]
            for k in range(1408 >> sstr): o += ["s_load_dword s36, s[20:21], s95", "s_add_u32 s95, s95, %d" % (1 << sstr)]
        return [I(l) for l in o[:-1]], []
    xflag = lambda rho: xfl0 if (xfl0 is not None and rho in (0, 1, 12, 13)) else xfl
    def xload(rho, regs):
        pre = [] if rho == 0 else [I("s_add_u32 s34, s34, s100")]
        if rho == 1: pre.append(I("s_mov_b32 s14, %d" % NB))
        so = "s97" if rho == 0 else "s34"
        if defer:
            if rho == 1: pre = [I("s_mov_b32 s43, s14")] + pre
            if rho == 0: pre = [I("s_mov_b32 s14, s43")]
            if rho == 3: pre.append(I("s_mov_b32 s14, %d" % NB))
        rn = ar if (x45a and rho >= 4) else vr
        ld = [VM("buffer_load_dwordx%d %s, v%d, s[12:15], %s offen %s" % (4 if m < 2 else 2, rn(regs[m], 4 if m < 2 else 2), vX[m], so, xflag(rho)), "x%d_%d" % (rho, m)) for m in range(3)]
        return pre, ld
    def gsrc(g):
        g = min(g, 26); sg, r = g // 3, g % 3
        return r, (sg % 3) * 18432 + (sg // 3) * 6144
    LATE = pos is not None and v0at <= 24
    POS = pos or [sg % NS for sg in range(9)]
    def slot(g): return 3 * NS if g == 27 else 3 * POS[g // 3] + g % 3
    def best_bias(sg):
        best = None
        for b in range(max(0, POS[sg] - 3), POS[sg] + 1):
            n = 0
            while sg + n < 9 and b <= POS[sg + n] <= b + 3: n += 1
            if best is None or n > best[0]: best = (n, b)
        return 18432 * best[1]
    BIAS0 = best_bias(0)
    def wdma(u):
        g0, g1 = 2 * u, 2 * u + 1
        (r0, o0), (r1, o1) = gsrc(g0), gsrc(g1)
        if u == 13 and nodummy:
            o = [I("s_mul_i32 s39, s96, 1536"), I("s_sub_u32 s37, s101, s36"), I("s_add_u32 m0, s39, %d" % (WB + 6144 * slot(g0))), I("s_add_u32 s37, s37, s39"), I("s_add_u32 s37, s37, %d" % o0)]
            return o, [VM("buffer_load_dwordx4 v246, s[20:23], s37 offen lds", "u13"),
                       [I("s_mov_b32 exec_hi, 0"), VM("buffer_load_dwordx4 v246, s[20:23], s37 offen offset:1024 lds", "u13"), I("s_mov_b32 exec_hi, -1")]]
        sb = {(0, 1, 0): 4, (1, 2, 0): 5, (2, 0, 18432): 6, (2, 0, 6144 - 36864): 7, (2, 2, 0): 101}[(r0, r1, o1 - o0)]
        d = slot(g1) - slot(g0)
        o = [I("s_add_u32 s37, s%d, %d" % (sb, o0))]
        if d == 1: o += [I("s_add_u32 m0, s35, %d" % (WB + 6144 * slot(g0)))]
        else: o = [I("s_mul_i32 s39, s32, %d" % (6144 * (d - 1))), I("s_add_u32 s39, s39, s35"), I("s_add_u32 m0, s39, %d" % (WB + 6144 * slot(g0)))] + o
        if o[-1][1].startswith("s_add_u32 m0"): o = o[::-1]
        lds = [VM("buffer_load_dwordx4 v%d, s[20:23], s37 offen offset:%d lds" % (vW[m], 1024 * m), "u%d" % u) for m in range(3)]
        return o, lds
    XR = {0: RAW0, 1: RAW1, 2: RAWE, 3: RAWO, 4: RAWE, 5: RAWO}
    if x45a: XR[4] = [SD, SD + 4, SD + 8]; XR[5] = [SD + 12, SD + 16, SD + 10]
    def touch():
        n = (9600 + 128 + (64 << tstride) - 1) // (64 << tstride)
        pre = [I("s_mul_i32 s3, s96, s100"), I("s_add_u32 s3, s3, s34"), I("s_add_u32 s3, s3, s42"), I("s_sub_u32 s3, s3, 192"), I("s_and_b32 s3, s3, 0xffffff80"),
               I("v_lshlrev_b32 v252, %d, v0" % tstride), I("s_mov_b32 s16, s12"), I("s_mov_b32 s17, s13"), I("s_mov_b32 s18, %d" % NB), I("s_mov_b32 s19, 0x20000")]
        ld = []
        for k in range(n):
            ld += [I("v_min_u32 v253, %d, v252" % (9600 + 64 - k * (64 << tstride))), I("v_add_u32 v253, s3, v253"),
                   VM("buffer_load_dword v255, v253, s[16:19], 0 offen", "touch"), I("s_add_u32 s3, s3, %d" % (64 << tstride))]
        return pre, ld
    def touch2(r0):
        pre = [I("s_add_u32 s95, s32, %d" % r0), I("s_mul_i32 s95, s95, s100"), I("s_add_u32 s95, s95, s34"), I("s_add_u32 s95, s95, s42"),
               I("s_sub_u32 s95, s95, 192"), I("s_and_b32 s95, s95, 0xffffff80"), I("s_mul_i32 s94, s33, 4864"), I("s_add_u32 s95, s95, s94"),
               I("v_min_u32 v246, 37, v0"), I("v_lshl_add_u32 v246, v246, 7, s95"), I("s_mov_b32 s94, s14"), I("s_mov_b32 s14, %d" % NB)]
        return pre, [VM("buffer_load_dword v255, v246, s[12:15], 0 offen", "touch"), I("s_mov_b32 s14, s94")]
    def item(z):
        if z[0] == "R": return touch2(int(z[1:]))
        if z == "T": return touch()
        if z in ("CS", "WS"): return scal(z)
        if z in ("TX", "TO"): return [I(l) for l in (TX if z == "TX" else TO).split("\n")], []
        if z == "W": return [], [VM("buffer_load_dword v255, v247, s[20:23], 0 offen", "W")]
        return xload(int(z[1:]), XR[int(z[1:])]) if z[0] == 'x' else wdma(int(z[1:]))
    plan = plan or dict(a="u0 u1 x0 u2", b="x1 u3 x2 u4", prep={0: "x3", 1: "u5", 2: "u6", 4: "u7", 5: "u8", 7: "u9 u10", 10: "u11", 12: "u12", 14: "u13", 18: "x4", 20: "x5"})
    A_ops = []
    for z in plan['a'].split():
        a, b = item(z); A_ops += a + b
    if not ilv: P.ext(A_ops)
    mark = len(P.ops)
    if pst and not ilv: P.ext(stamp())
    if early: xaddr()
    HOP = "s_mov_b64 exec, 0\ns_cmp_eq_u32 s96, 0\ns_cbranch_scc1 L_stub0\ns_cmp_eq_u32 s96, 1\ns_cbranch_scc1 L_stub1\ns_cmp_eq_u32 s96, 2\ns_cbranch_scc1 L_stub2\ns_branch L_stub3\nL_back:\ns_mov_b64 exec, -1"
    if stubs == 2: e(HOP)
    if stubs == 3: e(HOP.replace("L_back", "L_back0"))
    e("s_mov_b32 s24, s8\ns_mov_b32 s25, s9\ns_mov_b32 s26, %d\ns_mov_b32 s27, 0x20000" % NB)
    if stamps: e("s_mov_b32 s28, s10\ns_mov_b32 s29, s11\ns_mov_b32 s30, 0x100000\ns_mov_b32 s31, 0x20000")
    e("s_mov_b32 s16, 0xffff0000\ns_lshl_b32 s17, s32, 31\ns_xor_b32 s17, s17, 0xbf800000")
    for m in range(3): e("v_add_u32 v%d, %d, v%d" % (vVw[1][m], VBUF, vVw[0][m]))
    e("v_and_b32 v250, 15, v0\nv_lshrrev_b32 v251, 4, v0")
    e("v_lshrrev_b32 v252, 2, v250\nv_lshl_add_u32 v252, v251, 3, v252\nv_mul_u32_u24 v252, 192, v252")
    e("v_and_b32 v253, 3, v250\nv_lshl_add_u32 v252, v253, 3, v252")
    e("v_and_b32 v253, 1, v251\nv_lshlrev_b32 v253, 5, v253")
    e("s_mul_i32 s39, s33, 96\ns_mul_i32 s37, s32, 12288\ns_add_u32 s18, s37, %d\ns_sub_u32 s19, %d, s37" % (WB + BIAS0, WB + BIAS0 + 12288))
    for t in range(3):
        e("s_add_u32 s3, s39, %d\nv_xor_b32 v248, s3, v253\nv_add_u32 v248, v248, v252" % (32 * t))
        if km == 2: e("v_add_u32 v%d, s18, v248" % (vT + t))
        else: e("v_add_u32 v%d, s18, v248\nv_add_u32 v%d, %d, v248\nv_add_u32 v%d, s19, v248" % (vT + t, vT + 3 + t, WB + BIAS0 + 6144, vT + 6 + t))
    if km == 2:
        e("v_lshrrev_b32 v252, 2, v250\nv_and_b32 v248, 3, v250\nv_lshl_add_u32 v248, v252, 3, v248\nv_mul_u32_u24 v248, 192, v248")
        e("v_mov_b32 v249, %d\nv_mov_b32 v253, s19\nv_cmp_gt_u32 vcc, 2, v251\nv_and_b32 v252, 1, v252\nv_lshlrev_b32 v252, 5, v252" % (WB + BIAS0 + 6144))
        e("v_cndmask_b32 v249, v253, v249, vcc\nv_add_u32 v248, v248, v249\nv_and_b32 v249, 1, v251\nv_lshl_add_u32 v248, v249, 4, v248")
        for t in range(3): e("s_add_u32 s3, s39, %d\nv_xor_b32 v249, s3, v252\nv_add_u32 v%d, v249, v248" % (32 * t, vT + 3 + t))
    e("v_lshrrev_b32 v252, 2, v250\nv_cmp_eq_u32 vcc, v252, v251\nv_and_b32 v253, 1, v250\nv_lshlrev_b32 v253, 4, v253\nv_mov_b32 v248, 0x3f00\nv_lshlrev_b32 v248, v253, v248")
    e("v_cndmask_b32 v248, 0, v248, vcc\nv_and_b32 v252, 2, v250\nv_cmp_eq_u32 vcc, 0, v252\ns_lshl_b32 s3, s32, 15\nv_lshlrev_b32 v249, v253, s3")
    e("v_cndmask_b32 v%d, 0, v248, vcc\nv_cndmask_b32 v%d, v248, 0, vcc" % (SEL + 2, SEL + 3))
    e("v_xor_b32 v%d, v249, v%d\nv_xor_b32 v%d, v249, v%d" % (SEL + 6, SEL + 2, SEL + 7, SEL + 3))
    for k in (0, 1, 4, 5): e("v_mov_b32 v%d, 0" % (SEL + k))
    if km == 2:
        e("v_lshrrev_b32 v252, 3, v250\nv_and_b32 v248, 1, v251\nv_cmp_eq_u32 vcc, v252, v248\nv_mov_b32 v248, 0x3f00\nv_or_b32 v249, s3, v248")
        e("v_cmp_gt_u32 s[0:1], 2, v251\nv_bfe_u32 v252, v250, 1, 2\ns_nop 0\nv_cndmask_b32 v248, v248, v249, s[0:1]\nv_lshlrev_b32 v248, v253, v248\nv_cndmask_b32 v248, 0, v248, vcc")
        for k in range(4): e("v_cmp_eq_u32 vcc, %d, v252\ns_nop 1\nv_cndmask_b32 v%d, 0, v248, vcc" % (k, SEL + 6 + k))
    elif km: e("v_mov_b32 v%d, v%d\nv_mov_b32 v%d, v%d" % (SEL + 8, SEL + 2, SEL + 9, SEL + 3))
    else: e("v_mov_b32 v%d, 0\nv_mov_b32 v%d, 0" % (SEL + 8, SEL + 9))
    e("v_mul_u32_u24 v252, 576, v250")
    e("s_add_u32 s3, s32, 1\ns_mul_i32 s18, s3, %d\ns_mul_i32 s19, s32, %d" % (VROW, 3 * VROW))
    e("v_lshrrev_b32 v253, 1, v250\nv_and_b32 v253, 2, v253\nv_xor_b32 v253, v253, v251\nv_lshl_add_u32 v248, v253, 4, v252")
    e("v_add_u32 v%d, s18, v248\nv_add_u32 v%d, s19, v248" % (vF[0][0], vF[1][0]))
    e("v_add_u32 v253, 1, v250\nv_lshrrev_b32 v253, 1, v253\nv_and_b32 v253, 2, v253\nv_xor_b32 v253, v253, v251\nv_lshl_add_u32 v248, v253, 4, v252")
    e("v_add_u32 v%d, s18, v248\nv_add_u32 v%d, s19, v248" % (vF[0][1], vF[1][1]))
    if ilv:
        su = [('i', o[1].replace("s39", "s40").replace("s37", "s41")) for o in P.ops[mark:]]; del P.ops[mark:]
        nvm = sum(o[0] == 'vm' for o in A_ops); k = 0
        for o in A_ops:
            P.ext([o])
            if o[0] == 'vm':
                k += 1; n = len(su) // (nvm - k + 1) if k < nvm else len(su)
                P.ext(su[:n]); su = su[n:]
    LA = Prog(); la = LA.i if lateaddr else e
    if lateaddr: la("v_and_b32 v250, 15, v0\nv_lshrrev_b32 v251, 4, v0")
    la("s_mul_i32 s3, s96, 9216\ns_add_u32 s3, s3, %d\nv_lshl_add_u32 v%d, v0, 4, s3" % (EX, vEw))
    la("s_xor_b32 s3, s96, 2\ns_mul_i32 s3, s3, 9216\ns_add_u32 s3, s3, %d\nv_lshl_add_u32 v%d, v0, 4, s3" % (EX, vEr))
    la("s_mul_i32 s39, s32, %d\ns_mul_i32 s3, s33, 96\ns_add_u32 s39, s39, %d\ns_add_u32 s3, s3, s39" % (STGROW, STG))
    la("v_mul_u32_u24 v252, 592, v250\nv_lshl_add_u32 v252, v251, 3, v252\nv_add_u32 v%d, s3, v252" % vS)
    la("s_mul_i32 s3, s33, 288\nv_add_u32 v250, s3, v0")
    la("v_lshl_add_u32 v%d, v250, 4, s42" % vG)
    la("v_add_u32 v252, 4096, v%d\nv_bfrev_b32 v253, 1\nv_cmp_gt_u32 vcc, 32, v0\ns_nop 1\nv_cndmask_b32 v%d, v253, v252, vcc" % (vG, vG4))
    for m in range(5):
        if m == 4: la("v_min_u32 v250, 575, v250")
        la("v_mul_u32_u24 v251, 1821, v250\nv_lshrrev_b32 v251, 16, v251\nv_add_u32 v251, v251, v250\nv_lshl_add_u32 v%d, v251, 4, s39\nv_add_u32 v250, 64, v250" % vR[m])
    if pst: P.ext(stamp())
    if stubs == 1: e(HOP)
    if pst: P.ext(stamp())
    if stubs == 3: e("s_cmp_ge_u32 s96, 2\ns_cbranch_scc1 L_nohop\ns_mov_b64 exec, 0\ns_cmp_eq_u32 s96, 0\ns_cbranch_scc1 L_stub4\ns_branch L_stub5\nL_back:\ns_mov_b64 exec, -1\nL_nohop:")
    for z in plan['b'].split():
        a, b = item(z); P.ext(a); P.ext(b)

    free = [ST0 + 2 * k for k in range(24)] + [124, 126, 128, 130]
    stE = [None] * 10; stO = [None] * 10
    voq = [(VOUT + 4 * k, None) for k in range(4)]
    dw = [(0, i) for i in range(4)] + [(1, i) for i in range(4)] + [(2, i) for i in range(2)]
    def unpack(dst, src): return [Op('V', I("v_lshlrev_b32 v%d, 16, v%d" % (dst, src))), Op('V', I("v_and_b32 v%d, s16, v%d" % (dst + 1, src)))]
    def addsub(dst, a, b, sub, pk):
        if pk: return [Op('V', I("v_pk_add_f32 %s, %s, %s%s" % (vr(dst, 2), vr(a, 2), vr(b, 2), " neg_lo:[0,1] neg_hi:[0,1]" if sub else "")))]
        return [Op('V', I("v_%s_f32 v%d, v%d, v%d" % ("sub" if sub else "add", dst + k, a + k, b + k))) for k in range(2)]
    def cvt(dst, src): return Op('V', I("v_cvt_pk_bf16_f32 v%d, v%d, v%d" % (dst, src, src + 1)))
    def transform(tt, pk=False, part=None):
        val = []; wr = []; ld = []
        nxt = tt + 1 <= 5 and (tt >= 1 or x45 == 'v0')
        def reload(rho, regs, m, dep):
            nd = 4 if m < 2 else 2
            if nxt: ld.append(Op('R', VM("buffer_load_dwordx%d %s, v%d, s[12:15], %s offen %s" % (nd, vr(regs[m], nd), vX[m], "s18" if rho % 2 == 0 else "s19", xflag(rho)), "x%d_%d" % (rho, m)), deps=[(dep, 1)], name="ld%d_%d" % (rho, m)))
        def vrow(m, a, f):
            nd = 4 if m < 2 else 2
            q, last = voq.pop(0)
            later = []
            for i in range(nd):
                dst, x, y, sub = f(4 * m + i)
                if dst is None: dst = free.pop(0)
                val.extend(addsub(dst, x, y, sub, pk)); c = cvt(q + i, dst)
                if pk and pkgrp: later.append((c, dst))
                else: val.append(c); free.append(dst)
                if i == 0 and last: c.deps.append((last, 0))
            for c_, dst in later: val.append(c_); free.append(dst)
            o = Op('W', LG("ds_write_b%d v%d, %s offset:%d" % (32 * nd, vVw[tt % 2][m], vr(q, nd), a * VROW), "vw%d%s" % (tt, "b" if part == 'b' else "")), deps=[(c, 1)], cost=8 + 4 * nd, name="vw%d_%d_%d" % (tt, m, a))
            wr.append(o); voq.append((q, o))
        def epart(m):
            nd = 4 if m < 2 else 2; ne = {}
            val.append(Op('S', WV("x%d_%d" % (2 * tt + 2, m)), name="wx"))
            if x45a and tt == 1: val.extend(Op('V', I("v_accvgpr_read_b32 v%d, a%d" % (RAWE[m] + i, XR[4][m] + i))) for i in range(nd))
            for i in range(nd): ne[4 * m + i] = free.pop(0); val.extend(unpack(ne[4 * m + i], RAWE[m] + i))
            reload(2 * tt + 4, RAWE, m, val[-1])
            if part is None: vrow(m, 0, lambda d: (stE[d], stE[d], ne[d], True))
            vrow(m, 1, lambda d: (None, stO[d], ne[d], False))
            vrow(m, 2, lambda d: (None, stO[d], ne[d], True))
            for d in ne: stE[d] = ne[d]
        def opart(m):
            nd = 4 if m < 2 else 2; no = {}
            val.append(Op('S', WV("x%d_%d" % (2 * tt + 3, m)), name="wx"))
            if x45a and tt == 1: val.extend(Op('V', I("v_accvgpr_read_b32 v%d, a%d" % (RAWO[m] + i, XR[5][m] + i))) for i in range(nd))
            for i in range(nd): no[4 * m + i] = free.pop(0); val.extend(unpack(no[4 * m + i], RAWO[m] + i))
            reload(2 * tt + 5, RAWO, m, val[-1])
            vrow(m, 3, lambda d: (stO[d], no[d], stO[d], True))
            for d in no: stO[d] = no[d]
        def zpart(m):
            nd = 4 if m < 2 else 2; e0 = {}
            val.append(Op('S', WV("x0_%d" % m), name="wx"))
            for i in range(nd): e0[4 * m + i] = free.pop(0); val.extend(unpack(e0[4 * m + i], RAW0[m] + i))
            vrow(m, 0, lambda d: (e0[d], e0[d], stE[d], True))
        if part == 'a':
            for m in range(3): epart(m)
        elif part == 'b':
            for m in range(3): zpart(m)
            for m in range(3): opart(m)
        elif tt < emajor:
            for m in range(3): epart(m)
            for m in range(3): opart(m)
        else:
            for m in range(3): epart(m); opart(m)
        return val, wr, ld
    def v0_block():
        if stubs == 4: e(HOP)
        for z in plan.get('pre', "").split():
            a, b = item(z); P.ext(a); P.ext(b)
        q0 = []
        for z in plan.get('v0', "").split():
            a, b = item(z); q0 += [a + b[:1], b[1:2], b[2:]]
        for rho, st_, raw in ((0, stE, RAW0), (1, stO, RAW1))[(1 if defer else 0):]:
            for m in range(3):
                P.wv("x%d_%d" % (rho, m))
                for i in range(4 if m < 2 else 2):
                    d = 4 * m + i; st_[d] = free.pop(0)
                    for o in unpack(st_[d], raw[m] + i): P.ext(o.items)
        if x45 == 'v0': e("s_add_u32 s18, s34, s100\ns_add_u32 s19, s18, s100")
        val, wr, ld = transform(0, pk=usepk, part='a' if defer else None)
        wr = ld + wr
        done = set()
        for n, o in enumerate(val):
            assert all(d.gap is not None for d, k in o.deps)
            P.ext(o.items); done.add(id(o))
            if q0 and n % vstep == vstep - 1: P.ext(q0.pop(0))
            for w in list(wr):
                if id(w.deps[0][0]) in done and w.deps[0][0] is not o: P.ext(w.items); wr.remove(w); w.gap = -1; break
        for w in wr: P.ext(w.items); w.gap = -1
        for z in q0: P.ext(z)

    def fragreads(n):
        t, b = n // 6, n % 6
        return [Op('R', LG("ds_read_b128 %s, v%d offset:%d" % (ar(FB[n % 2] + 4 * p), vF[b // 3][p // 3], (t % 2) * VBUF + 192 * p + 64 * (b % 3)), "f%d" % n), name="f%d" % n) for p in range(5)]
    bias = [BIAS0]
    def trreads(f):
        sg, t = f // 3, f % 3
        off = 18432 * POS[sg]; pre = []
        if not (0 <= off - bias[0] <= 65535 - 768):
            nb = best_bias(sg)
            pre = [Op('V', I("v_add_u32 v%d, %d, v%d" % (vT + k, (nb - bias[0]) & 0xffffffff, vT + k))) for k in range(6 if km == 2 else 9)]; bias[0] = nb
        tm = TM + 8 * (f % 3)
        dst = [ar(U2A + 4 * f, 2), ar(U2A + 4 * f + 2, 2), vr(tm, 2), vr(tm + 2, 2), vr(tm + 4, 2), vr(tm + 6, 2)]
        if km == 2:
            return pre, [Op('R', LG("ds_read_b64_tr_b16 %s, v%d offset:%d" % (dst[u], vT + t, off - bias[0] + 768 * u), "tr%d" % f)) for u in range(2)] + \
                        [Op('R', LG("ds_read_b128 %s, v%d offset:%d" % (vr(tm + 4 * u), vT + 3 + t, off - bias[0] + 768 * u), "tr%d" % f)) for u in range(2)]
        if km: dst[3], dst[4] = dst[4], dst[3]
        return pre, [Op('R', LG("ds_read_b64_tr_b16 %s, v%d offset:%d" % (dst[k], vT + 3 * (k // 2) + t, off - bias[0] + 768 * (k % 2)), "tr%d" % f)) for k in range(6)]
    def prep_mf(f):
        lo, hi = DD[f % 2]; tm = TM + 8 * (f % 3)
        sl, sh, nl, nh = vr(SEL + 2), vr(SEL), vr(SEL + 6), vr(SEL + 4)
        if km == 2: return ["%s %s, %s, %s, 0" % (MF, vr(lo), sl, u2(f)), "%s %s, %s, %s, 0" % (MF, vr(hi), sh, u2(f)),
                            "%s %s, %s, %s, %s" % (MF, vr(lo), vr(tm), nl, vr(lo)), "%s %s, %s, %s, %s" % (MF, vr(hi), vr(tm + 4), nl, vr(hi))]
        if km: return ["%s %s, %s, %s, 0" % (MF, vr(lo), sl, u2(f)), "%s %s, %s, %s, 0" % (MF, vr(hi), sh, u2(f)),
                       "%s %s, %s, %s, %s" % (MF, vr(lo), nl, vr(tm), vr(lo)), "%s %s, %s, %s, %s" % (MF, vr(hi), nl, vr(tm + 4), vr(hi))]
        return ["%s %s, %s, %s, 0" % (MF, vr(lo), sl, u2(f)), "%s %s, %s, %s, 0" % (MF, vr(hi), sh, u2(f)),
                "%s %s, %s, %s, %s" % (MF, vr(lo), nl, vr(tm), vr(lo)), "%s %s, %s, %s, %s" % (MF, vr(hi), nh, vr(tm), vr(hi)),
                "%s %s, %s, %s, %s" % (MF, vr(lo), sl, vr(tm + 4), vr(lo)), "%s %s, %s, %s, %s" % (MF, vr(hi), sh, vr(tm + 4), vr(hi))]
    def prep_cvt(f, g0):
        lo, hi = DD[f % 2]; k, b = u1loc[f]
        d = b if k == 'v' else TMP
        c = [cvt(d, lo), cvt(d + 1, lo + 2), cvt(d + 2, hi), cvt(d + 3, hi + 2)]
        for n, o in enumerate(c):
            if km: o.early = g0 + (5 if n < 2 else 6); o.dead = g0 + (5, 6, 6, 7)[n]
            else: o.early = g0 + (7 if n < 2 else 8); o.dead = g0 + 8 + n
        if k == 'a':
            w = [Op('V', I("v_accvgpr_write_b32 a%d, v%d" % (b + n, d + n))) for n in range(4)]
            for n, o in enumerate(w): o.dead = g0 + ((8, 8, 9, 9)[n] if km else 13 + n)
            c += w
        return c
    need_u = lambda sg: "u%d" % ((3 * sg + 2) // 2)
    if v0at == 0:
        v0_block()
        for z in plan.get('c', "").split():
            a, b = item(z); P.ext(a); P.ext(b)
    P.wv(need_u(bars.get(0, 0) if bars else 0)); e("s_barrier")
    P.ext(stamp())
    for f in (0, 1):
        for o in trreads(f)[1]: P.ext(o.items)
    nextpin = [0]; NM = 4 if km else 6
    cstream = []
    def prep_span(f0, f1):
        mf = []; ops = []; pin = {}
        rd = []
        for f in range(f0, f1):
            g = NM * f
            mf += prep_mf(f)
            if f == f0: P.wl("tr%d" % f)
            else: pin.setdefault(g - 1, []).append(WL("tr%d" % f))
            if f + 2 < 27:
                if (f + 2) % 3 == 0 and (bars is None or (f + 2) // 3 in bars):
                    sg = (f + 2) // 3
                    tags = [need_u(bars[sg] if bars else sg)]
                    b = [WV(*tags), I("s_barrier")]
                    if not LATE and (f == v0at + 1 or f == v0at or f == v0at + 2): b = [WL("vw0")] + b
                    if f == f0: P.ext(b)
                    else: pin.setdefault(g - 1, []).extend(b)
                pre, r = trreads(f + 2)
                for o in pre: o.early = g - 1 if f > f0 else g; o.dead = o.early
                for n, o in enumerate(r): o.early = o.dead = g + ((0, 0, 1, 2, 2, 3)[n] if km == 1 else n)
                chain0(r)
                if pre:
                    if f == f0:
                        for o in pre: P.ext(o.items)
                    else:
                        ops += pre; r[0].deps = [(o, 1) for o in pre]
                        for o in pre: o.deps.append((rd[-1], 0))
                rd += r
            for z in plan['prep'].get(f, "").split():
                a, b = item(z)
                gp = max(g, nextpin[0]); assert gp + 1 + 2 * dstep < NM * f1
                pin.setdefault(gp, []).extend(a)
                for n, o in enumerate(b): pin.setdefault(gp + 1 + n * dstep, []).extend(o if isinstance(o, list) else [o])
                nextpin[0] = gp + max(len(b) + 1, len(b) * dstep)
            if LATE and f == 26:
                pin[g - 1].extend([WL("vw0"), I("s_barrier")])
                for n, o in enumerate(fragreads(0)): pin.setdefault(g + (max(n - 1, 0) if km else n), []).extend(o.items)
            if pfine and f in pfine: pin.setdefault(g + NM - 1, []).extend(stamp())
            c = prep_cvt(f, g)
            if cstream: c[0].deps.append((cstream[-1], 0))
            chain(c); cstream.extend(c)
        ops += rd + [o for o in cstream if o.gap is None]
        out, est, pend, late = schedule(mf, ops, pin, g0=NM * f0)
        P.ext(out)
        assert all(o in cstream for o in pend), [o.items for o in pend]
        if verbose: print("prep", f0, f1, sum(est), late)
        return pend
    if v0at == 0: pend = []
    else: pend = prep_span(0, v0at)
    e("s_nop 7")
    for o in pend: P.ext(o.items); o.gap = -1
    if v0at == 27: P.ext(stamp()); e("s_barrier")
    if v0at > 0: v0_block()
    P.ext(stamp())
    if v0at < 27: pend = prep_span(v0at, 27)
    else:
        pend = []
        for z in ("x4", "x5"):
            if not x45a and x45 != 'v0': a, b = item(z); P.ext(a); P.ext(b)
        P.wl("vw0"); e("s_barrier")
    if defer: e("s_add_u32 s18, s18, s98")
    elif x45 == 'v0': e("s_add_u32 s18, s18, s98\ns_add_u32 s19, s19, s98")
    else: e("s_add_u32 s18, s34, s100\ns_add_u32 s19, s18, s100")
    if v0at < 27: P.ext(stamp())

    mf = []; lastw = {}
    allp = [(p, tl, s_) for p in range(3) for tl in range(3) for s_ in range(3)]
    orders = {'pts': allp, 'B': sorted(allp, key=lambda x: (x[0] + x[2], x[2], x[1])), 'A': sorted(allp, key=lambda x: (x[2], x[1], x[0])),
              'tps': sorted(allp, key=lambda x: (x[1], x[0], x[2])), 'pst': sorted(allp, key=lambda x: (x[0], x[2], x[1])),
              'Az': [(p if (3 * s_ + tl) % 2 == 0 else 2 - p, tl, s_) for s_ in range(3) for tl in range(3) for p in range(3)]}
    for t in range(6):
        for b in range(6):
            n = 6 * t + b; kc = b % 3; seen = set()
            for p, tl, s_ in orders[morder if (kc < 2 or not lastpts) else 'pts']:
                k = 3 * p + tl; first = kc == 0 and k not in seen; seen.add(k)
                f = 3 * (3 * kc + s_) + tl
                if b < 3: d = vr(AA + 4 * k); c = "0" if first else d; u = u1(f)
                else: d = vr(AB + 4 * k); c = vr(AA + 4 * k) if first else d; u = u2(f)
                lastw[(b // 3, k)] = len(mf) % 162
                mf.append("%s %s, %s, %s, %s" % (MF, d, u, ar(FB[n % 2] + 4 * (p + s_)), c))
    ops = []; pin = {}
    if not LATE:
        for o in fragreads(0): P.ext(o.items)
    else: e("s_nop 3")
    e("s_nop 3")
    for o in pend: P.ext(o.items); o.gap = -1
    P.wl("f0")
    if v0at < 27 and not LATE: e("s_barrier")
    if onebar:
        la("v_add_u32 v248, 18944, v%d\ns_lshl_b32 s3, s96, 8\ns_add_u32 s3, s3, 151552\nv_lshl_add_u32 v249, v0, 2, s3\nv_xor_b32 v253, 0x200, v249\nv_mov_b32 v254, 0" % vS)
    lat = [Op('V' if o[1].startswith("v_") else 'S', o) for o in LA.ops]
    if lat: chain(lat); pace(lat, 0, 40); ops += lat
    if onebar: ops.append(Op('W', LG("ds_write_b32 v249, v254", "ew0"), deps=[(lat[-1], 1)], cost=12, dead=50))
    X1 = [162 * t + x1pos for t in range(5)] + [162 * 5 + (x1last if midadd else 112)]
    prevval = prevadv = None
    if defer:
        val, wr, ld = transform(0, part='b')
        chain(val); pace(val, 0, xbpos - 3 - wmargin); chain(wr); chain(ld)
        for o in wr: o.dead = min(o.deps[0][0].dead + 8, xbpos - wmargin)
        for o in ld: o.dead = o.deps[0][0].dead + 4
        prevadv = Op('S', I("s_add_u32 s19, s19, s98"), deps=[(ld[-1], 1)], dead=ld[-1].dead + 3)
        ops += val + wr + ld + [prevadv]; prevval = val[-1]; vw0b = wr
        pin.setdefault(xbpos, []).extend([WL("vw0b"), I("s_barrier")])
    rq = [(RECV + 4 * k, None) for k in range(3)]
    tail = []; prevst = None; spins = []; allso = []; lastew = {}
    vS2, vFw, vFr, vFc, vFt = 248, 249, 253, 254, 255
    for t in range(6):
        base = 162 * t
        for b in range(6):
            n = 6 * t + b + 1
            if n == 36: break
            r = fragreads(n); st = base + 27 * b
            lo = st + 1 if b < 5 else X1[t] + 1
            if defer and n == 3: lo = xbpos + 1
            for i, o in enumerate(r): o.early = lo; o.dead = max(lo + fstep * i, st + 19 - fstep * (4 - i))
            chain(r); ops += r
            pin.setdefault(st + 26, []).append(WL("f%d" % n))
        tags = ["ew%d" % t]
        if t < 5:
            val, wr, ld = transform(t + 1)
            lo = base - 161 + x1pos if t > 0 else t1lo
            for o in val + wr: o.early = lo
            if tearly and t > 0:
                for o in val: o.early = lo - 30
                val[0].deps.append((prevval, 1))
            elif prevval: val[0].deps.append((prevval, 1))
            prevval = val[-1]
            chain(val); pace(val, lo + (tdelay if t > 0 else 0), base + x1pos - 3 - wmargin)
            for o in wr: o.dead = min(o.deps[0][0].dead + 8, base + x1pos - wmargin)
            chain(wr)
            for o in ld: o.dead = o.deps[0][0].dead + 6
            if ld:
                adv = Op('S', [I("s_add_u32 s18, s18, s98"), I("s_add_u32 s19, s19, s98")], deps=[(ld[-1], 1)], dead=ld[-1].dead + 4)
                chain(ld); ops.append(adv)
                if prevadv: ld[0].deps.append((prevadv, 1))
                prevadv = adv
            ops += val + wr + ld
            tags.append("vw%d" % (t + 1))
        ew = [Op('W', LG("ds_write_b128 v%d, %s offset:%d" % (vEw, vr(AA + 4 * k), 1024 * k), "ew%d" % t), early=base + max(lastw[(0, k)] + 3, x2pos + 1), name="ew") for k in range(9)]
        if onebar and t > 0:
            fr = Op('R', LG("ds_read_b32 v%d, v%d" % (vFt, vFr), "fr%d" % t), early=base + chkpos - 10, dead=base + chkpos)
            c1 = Op('S', WL("fr%d" % t), deps=[(fr, rlat)], dead=base + chkpos + rlat + 2)
            c2 = Op('V', I("v_readfirstlane_b32 s3, v%d" % vFt), deps=[(c1, 0)], dead=c1.dead)
            c3 = Op('S', [I("s_cmp_ge_u32 s3, %d" % t), I("s_cbranch_scc0 L_spin%d" % t), I("L_go%d:" % t)], deps=[(c2, 1)], dead=c1.dead + 2)
            ew[0].deps.append((c3, 1)); ops += [fr, c1, c2, c3]
            spins.append("L_spin%d:\nds_read_b32 v%d, v%d\ns_waitcnt lgkmcnt(0)\nv_readfirstlane_b32 s3, v%d\ns_nop 3\ns_cmp_ge_u32 s3, %d\ns_cbranch_scc0 L_spin%d\ns_branch L_go%d" % (t, vFt, vFr, vFt, t, t, t))
        if onebar and t > 0: tags.append("sw%d" % (t - 1))
        if split05 and t in (0, 5):
            ew = [Op('W', LG("ds_write_b64 v%d, %s offset:%d" % (vEw, vr(AA + 4 * k + 2 * u, 2), 1024 * k + 8 * u), "ew%d" % t), early=ew[k].early, cost=16, name="ew") for k in range(9) for u in range(2)]
        lastew[t] = ew[-1]
        chain(ew); pace(ew, base + (ewlo if t < 5 else 60), X1[t] - wmargin); ops += ew
        pin.setdefault(X1[t], []).extend([WL(*tags), I("s_barrier")])
        X2 = base + 162 + x2pos
        ev = []; er = []; cvs = []; ec = []
        for k in range(9):
            q, last = rq.pop(0)
            r = Op('R', LG("ds_read_b128 %s, v%d offset:%d" % (vr(q), vEr, 1024 * k), "er%d_%d" % (t, k)), deps=[(last, 1)], early=X1[t] + 1, name="er")
            w = Op('S', WL("er%d_%d" % (t, k)), deps=[(r, rlat)], early=base + lastw[(1, k)] + 3, name="wer")
            fm = [Op('V', I("v_fma_f32 v%d, v%d, s17, v%d" % (AB + 4 * k + i, q + i, AB + 4 * k + i))) for i in range(4)]
            c = [cvt(AB + 4 * k, AB + 4 * k), cvt(AB + 4 * k + 1, AB + 4 * k + 2)]
            if t == 5 and midadd:
                w.early = base + 113 + 3 * k; w.dead = base + 128 + 3 * k; r.dead = w.dead - rlat - 1
                for i, o in enumerate(fm): o.dead = base + 130 + 3 * k + i
                for i, o in enumerate(c): o.early = base + lastw[(1, k)] + 3; o.dead = o.early + i
                c[0].deps.append((fm[-1], 1)); ec += c; c_ = []
            else: c_ = c
            ev += [w] + fm + c_; er.append(r); cvs.append(c[1]); rq.append((q, fm[-1]))
        chain(ev); chain(er)
        if t == 5 and midadd: chain(ec); mid = [o for o in ev if o.kind == 'V']
        else:
            pace(ev, X1[t] + 3 + rlat, X2 - 3 - wmargin)
            for k, r in enumerate(er): r.dead = ev[7 * k].dead - rlat - 1
        if onebar and t < 5:
            f1 = Op('V', I("v_mov_b32 v%d, %d" % (vFc, t + 1)), early=X1[t] + 1, dead=er[8].dead)
            f2 = Op('W', LG("ds_write_b32 v%d, v%d" % (vFw, vFc), "fw"), deps=[(er[8], 1), (f1, 1)], cost=12, dead=er[8].dead + 4)
            ops += [f1, f2]
        vS_ = vS2 if (onebar and t % 2) else vS
        so_ = " offset:18944" if (onebar and t % 2) else ""
        XS = X1[t + 1] if (onebar and t < 5) else X2
        off = lambda k: 24 * (k // 3) + 4 * (k % 3)
        sw = [Op('W', LG("ds_write2_b64 v%d, %s, %s offset0:%d offset1:%d" % (vS_, vr(AB + 8 * k, 2), vr(AB + 8 * k + 4, 2), off(2 * k), off(2 * k + 1)), "sw%d" % t), deps=[(cvs[2 * k + 1], 1)], name="sw") for k in range(4)]
        sw.append(Op('W', LG("ds_write_b64 v%d, %s offset:%d" % (vS_, vr(AB + 32, 2), 8 * off(8)), "sw%d" % t), deps=[(cvs[8], 1)], cost=16, name="sw"))
        for o in sw: o.dead = min(o.deps[0][0].dead + 5, X2 - wmargin)
        chain(sw)
        sr = [Op('R', LG("ds_read_b128 %s, v%d%s" % (ar(SD + 4 * m), vR[m], so_), "sr%d_%d" % (t, m)), early=XS + (stlo if onebar and t < 4 else 1), dead=XS + (stlo + 20 if onebar and t < 4 else 6) + 4 * m, name="sr") for m in range(5)]
        if onebar and t < 4: XS += stlo + 14
        for m in range(5):
            if prevst: sr[m].deps.append((prevst[2 * m + 1], 1))
        chain(sr)
        so = []
        for m in range(5):
            w = Op('S', WL("sr%d_%d" % (t, m)), deps=[(sr[m], slat)], dead=XS + (24 + 12 * m if t < 4 or not onebar else 16 + 6 * m), name="wsr")
            a = "v%d, s[24:27], s38 offen offset:%d" % (vG, 1024 * m) if m < 4 else "v%d, s[24:27], s38 offen" % vG4
            s_ = Op('W', VM("buffer_store_dwordx4 %s, %s %s" % (ar(SD + 4 * m), a, stflags), "st"), deps=[(w, 1)], early=XS + (14 + 10 * m if t < 4 or not onebar else 10 + 5 * m), dead=XS + (28 + 12 * m if t < 4 or not onebar else 18 + 6 * m), name="st")
            so += [w, s_]
        so.append(Op('S', I("s_add_u32 s38, s38, s98"), deps=[(so[-1], 1)], dead=so[-1].dead + 6))
        if prevst: so[1].deps.append((prevst[-1], 0))
        prevst = so
        ops += ev + er + sw + ec
        if t < 5:
            if not onebar: pin.setdefault(X2, []).extend([WL("sw%d" % t), I("s_barrier")])
            ops += sr + so; allso.append((t, sr))
        else: tail = (sr, so)
        if fine is not None:
            if t == fine[0]:
                for p_ in fine[1]: pin.setdefault(base + p_, []).extend(stamp())
        elif stamps and (not pfine or t == 0): pin.setdefault(base + 161, []).extend(stamp())
    out, est, pend, late = schedule(mf, ops, pin, wgap=wgap, rgap=rgap)
    if estonly == 'map':
        row = []; cur = None
        for o in out:
            t_ = o[1] if o[0] in ('i', 'vm', 'lg') else 'wait'
            if isinstance(t_, str) and t_.startswith("v_mfma"): cur = []; row.append(cur)
            else: cur.append('c' if t_ == 'wait' else 'W' if ('write' in t_ or 'store' in t_) else 'R' if ('read_b' in t_ or 'load' in t_) else 'v' if t_.startswith('v_') else 's')
        for g in range(324, 486): print(g - 324, "".join(row[g]), est[g], end=" | ")
        print()
    if estonly: return [sum(est[162 * t:162 * t + 162]) for t in range(6)], len([l for l in late if l[1] < 900])
    if verbose:
        print("main est cycles per iteration:", [sum(est[162 * t:162 * t + 162]) for t in range(6)])
        print("late:", late)
        if fine:
            b = 162 * fine[0]; pts = fine[1]
            print("est ranges", [(pts[i], pts[i+1], sum(est[b+pts[i]+1:b+pts[i+1]+1])) for i in range(len(pts)-1)])
    if midadd:
        for n, o in enumerate(mid): assert o.gap is not None and o.gap <= 810 + 133 + 3 * (n // 4), (n, o.gap)
    for t, so in allso:
        tb = t + 2 if onebar else t + 1
        if tb < 6: assert all(o.gap is not None and o.gap < lastew[tb].gap for o in so), t
    for o in ops:
        if o.gap is None: continue
        if o.name.startswith("vw0"): assert o.gap < xbpos
        elif o.name.startswith("vw"): tt = int(o.name[2]); assert o.gap < X1[tt - 1] and (tt < 2 or o.gap > X1[tt - 2]), o.name
    P.ext(out)
    if not strict: e("s_nop 7")
    pend.sort(key=lambda o: (o.kind != 'W', o.dead))
    while pend:
        for o in pend:
            if all(d.gap is not None for d, k in o.deps): P.ext(o.items); o.gap = 10**6; pend.remove(o); break
        else: raise Exception("stuck")
    P.wl("sw5"); e("s_barrier")
    for o in tail[0]: P.ext(o.items)
    for o in tail[1][:-1]: P.ext(o.items)
    if stamps:
        P.ext(stamp())
        e("s_waitcnt vmcnt(0)"); P.ext(stamp())
        e("s_waitcnt lgkmcnt(0)\ns_cmp_lg_u32 s96, 0\ns_cbranch_scc1 L_end")
        if probe is not None:
            a, b = probe[:2]
            if len(probe) > 2: e("s_sub_u32 s3, s%d, s%d\ns_add_u32 s3, s3, 4000" % (44 + 4 * b, 44 + 4 * a))
            else: e("s_sub_u32 s3, s%d, s%d\ns_mul_i32 s3, s3, 10\ns_add_u32 s3, s3, 4000" % (46 + 4 * b, 46 + 4 * a))
            if pwg is not None: e("s_cmp_lg_u32 s2, %d\ns_cselect_b32 s3, 4000, s3" % pwg)
            e("L_spin:\ns_memrealtime s[4:5]\ns_waitcnt lgkmcnt(0)\ns_sub_u32 s4, s4, s46\ns_cmp_lt_u32 s4, s3\ns_cbranch_scc1 L_spin\ns_branch L_end")
        e("s_lshl_b32 s3, s2, 8\nv_mov_b32 v1, s3")
        for i in range(nst[0]):
            for j in range(4): e("v_mov_b32 v%d, s%d" % (4 + j, 44 + 4 * i + j))
            e("buffer_store_dwordx4 v[4:7], v1, s[28:31], 0 offen offset:%d\ns_nop 1" % (16 * i))
    e("L_end:\ns_endpgm")
    for z in spins: e(z)
    assert nst[0] <= 12
    body = P.text()
    if strict: body = hazcheck.pad(body)
    if stubs: body, ns = add_page_stubs(body, "L_back", 0x300 if palign else 0xd00, split=(stubs == 3))
    txt = HEADER.format(grid=256, block=256, lds=163840, comment="; 3x3 convolution: Winograd F(2,3) over rows, MFMA over (tap, channel)") + body + \
        FOOTER.format(nv=512, ns=102, acc=256, extra="  .amdhsa_float_denorm_mode_32 3\n")
    if palign: txt = txt.replace(".text\n", ".text\n.p2align 12\n", 1)
    return txt, nst[0]
if __name__ == "__main__":
    sys.path.insert(0, "bench")
    from build import build
    import json
    out = []
    def mk(name, **kw):
        t, n = gen(**kw); open("bench/%s.s" % name, "w").write(t); build("bench/%s.s" % name, "bench/%s.co" % name)
        out.append("%s.co:256:256:163840:%d" % (name, n))
    exec(sys.argv[1])
    open("args.txt", "w").write(" ".join(out))
    print(json.dumps(["bench/run_host", "bench/args.txt"] + ["bench/" + x.split(":")[0] for x in out]))
```

```python
import sys
from asmlib import *
import hazcheck
NB = 28311552; RB = 73728
VROW = 9600; VBUF = 38400; EX = 76800; STG = 113664; STGROW = 9472
MF = "v_mfma_f32_16x16x32_bf16"
DOC = """;
; horizontal taps and the 96 input channels summed by v_mfma_f32_16x16x32_bf16.  Generated by gen/gen_wino.py.
;  * wave (p, h): transform positions {1,0} (p=0) or {2,3} (p=1), output channels 48h..48h+47; its 54 U fragments
;    (starts from A); A is swapped with the partner wave through LDS; rows are staged in LDS and stored as whole lines
;  * s_cbranch_execz at page starts: visited once with EXEC=0 at start-up to pull those code lines into the I-cache"""
def gen(stamps=False, only=None, stflags="sc0 sc1", probe=None, fine=None, v0at=9, x2pos=44, verbose=False, plan=None, usepk=True, wmargin=6, wgap=3, rlat=7, slat=10, WB=38400, NS=6, x45a=False, x45='plan', lateaddr=True, t1lo=12, pfine=None, stubs=0, dstep=1, tdelay=0, x1pos=150, ewlo=66, estonly=False, rgap=1, tearly=True, fstep=1, morder='pts', lastpts=True, pos=None, bars=None, midadd=True, x1last=104, km=False, vstep=10, tstride=7, onebar=False, chkpos=48, stlo=8, early=False, pst=False, ilv=False, wpfw=0, tlb=0, palign=False, pwg=100, cpf=True, wpf=True, sstr=7, emajor=0, defer=False, xbpos=56, pkgrp=True, split05=False, xfl='', xfl0=None, strict=True, nodummy=False, wp41=False, emul=0, x4late=0, laprep=False, mapit=2, t0lo=0, shift=False, elo=60, oend=45, split5=False, xe=146, st4=False, vmgap=0):
    P = Prog(); e = P.i
    nst = [0]; cnt = [0]
    def stamp():
        if not stamps: return []
        cnt[0] += 1
        if only is not None and cnt[0] - 1 not in only: return []
        k = 44 + 4 * nst[0]; nst[0] += 1
        return [I("s_memtime s[%d:%d]" % (k, k + 1)), I("s_memrealtime s[%d:%d]" % (k + 2, k + 3))]
    vX = [1, 2, 3]; vVw = [[4, 5, 6], [7, 8, 9]]; vF = [[10, 11], [12, 13]]; vEw, vEr = 14, 15
    vS = 16; vR = [17, 18, 19, 20, 21]; vG, vG4 = 22, 23
    AA, AB = 24, 60; RECV = 96; VOUT = 108
    RAWE = [132, 136, 140]; RAWO = [144, 148, 142]; ST0 = 152; U1V = 200; TMP = 248
    U2A = 0; U1A = 108; FB = [168, 188]; SD = 208
    RAW0 = [60, 64, 68]; RAW1 = [72, 76, 70]; vT = 80; vW = [89, 90, 91]; SEL = 96; TM = 24; DD = [(48, 52), (56, 92)]
    sP, sH = 32, 33
    u1loc = {}; nv = na = 0
    for f in range(27):
        if f % 2 == 0 and nv < 12: u1loc[f] = ('v', U1V + 4 * nv); nv += 1
        else: u1loc[f] = ('a', U1A + 4 * na); na += 1
    assert nv == 12 and na == 15
    def u1(f): k, b = u1loc[f]; return (vr if k == 'v' else ar)(b)
    def u2(f): return ar(U2A + 4 * f)
    e("s_cmp_ge_u32 s2, 256\ns_cbranch_scc1 L_end")
    P.ext(stamp())
    e("s_load_dwordx4 s[4:7], s[0:1], 0\ns_load_dwordx2 s[8:9], s[0:1], 16")
    if stamps: e("s_load_dwordx2 s[10:11], s[0:1], 32")
    e("v_lshrrev_b32 v250, 6, v0\nv_and_b32 v0, 63, v0\nv_readfirstlane_b32 s96, v250")
    e("s_and_b32 s42, s2, 7\ns_lshr_b32 s43, s2, 3")
    if cpf:
        e("s_cmp_lg_u32 s96, 3\ns_cbranch_scc1 L_nocpf")
        e("s_getpc_b64 s[40:41]\nL_pc:")
        e("s_and_b32 s3, s43, 3\ns_lshl_b32 s3, s3, 13")
        e("v_lshl_add_u32 v251, v0, 7, s3\nv_min_u32 v251, L_end-L_pc, v251")
        e("global_load_dword v254, v251, s[40:41]")
        e("L_nocpf:")
    e("s_mul_i32 s42, s42, 9216")
    e("s_lshr_b32 s32, s96, 1\ns_and_b32 s33, s96, 1")
    e("s_and_b32 s3, s43, 1\ns_mul_i32 s38, s43, 12\ns_mul_i32 s39, s3, 11\ns_add_u32 s38, s38, s39\ns_mul_i32 s38, s38, %d" % RB)
    e("s_mul_i32 s39, s3, %d\ns_sub_u32 s100, %d, s39" % (2 * RB, RB))
    e("s_mul_i32 s101, s3, %d" % (2 * 55296))
    e("s_sub_u32 s99, 55296, s101")
    e("s_sub_u32 s34, s38, s100")
    e("s_mul_i32 s39, s32, s100\ns_add_u32 s38, s38, s39\ns_lshl_b32 s98, s100, 1")
    e("s_mul_i32 s36, s33, 3072\ns_add_u32 s101, s101, s36")
    e("v_lshlrev_b32 v89, 4, v0\nv_xor_b32 v91, 32, v89\nv_and_b32 v251, 32, v0\nv_xor_b32 v90, v251, v89")
    if nodummy: e("s_lshl_b32 s3, s33, 5\nv_xor_b32 v246, s3, v89")
    def xaddr():
        e("s_mul_i32 s39, s96, 150\nv_add_u32 v250, s39, v0")
        e("s_sub_u32 s37, s42, 192")
        e("s_cmp_eq_u32 s42, 0\ns_cselect_b32 s3, 12, 0")
        e("s_cmp_eq_u32 s42, %d\ns_cselect_b32 s41, 12, s3\ns_sub_u32 s41, 600, s41" % (7 * 9216))
        e("v_bfrev_b32 v253, 1")
        e("v_subrev_u32 v248, 20, v0\nv_cmp_gt_u32 vcc, 44, v0\ns_add_u32 s39, s39, 128\ns_nop 0\nv_cndmask_b32 v248, v248, v0, vcc")
        e("v_and_b32 v249, 1, v248\nv_lshlrev_b32 v249, 3, v249\nv_lshrrev_b32 v248, 1, v248\nv_add_u32 v248, s39, v248")
        for m in range(3):
            n = 250 if m < 2 else 248
            e("v_subrev_u32 v252, s3, v%d\nv_cmp_gt_u32 vcc, s41, v252\nv_lshl_add_u32 v251, v%d, 4, s37" % (n, n))
            if m == 2: e("v_add_u32 v251, v251, v249")
            else: e("s_nop 0")
            e("v_cndmask_b32 v%d, v253, v251, vcc" % vX[m])
            e("v_mul_u32_u24 v251, 455, v%d\nv_add_u32 v251, 455, v251\nv_lshrrev_b32 v251, 15, v251\nv_and_b32 v251, 2, v251\nv_xor_b32 v251, v251, v%d" % (n, n))
            if m == 2: e("v_lshl_add_u32 v%d, v251, 4, v249" % vVw[0][m])
            else: e("v_lshlrev_b32 v%d, 4, v251" % vVw[0][m])
            if m == 0: e("v_add_u32 v250, 64, v250")
    if not early: xaddr()
    e("s_mov_b32 s15, 0x20000\ns_mov_b32 s22, 165888\ns_mov_b32 s23, 0x20000")
    e("s_mul_i32 s39, s32, s99\ns_add_u32 s40, s101, s39\ns_lshl_b32 s3, s99, 1\ns_add_u32 s101, s101, s3\ns_sub_u32 s3, 18432, s3\ns_mul_i32 s3, s3, s32\ns_add_u32 s41, s101, s3")
    e("s_mul_i32 s97, s32, 49152\ns_mul_i32 s35, s32, 6144\ns_add_u32 s35, s35, s36")
    e("s_cmp_ge_u32 s34, %d\ns_cselect_b32 s14, 0, %d\ns_cselect_b32 s39, 0, s34" % (NB, NB))
    if wp41: e("s_mul_i32 s3, s43, 5248\nv_min_u32 v247, 40, v0\nv_lshl_add_u32 v247, v247, 7, s3")
    else: e("s_mul_i32 s3, s43, 3121\ns_lshr_b32 s3, s3, 16\ns_mul_i32 s3, s3, 21\ns_sub_u32 s3, s43, s3\ns_lshl_b32 s3, s3, 13\ns_cmp_eq_u32 s96, %d\ns_cselect_b32 s3, s3, 0x40000000\nv_lshl_add_u32 v247, v0, 7, s3" % wpfw)
    if pst: P.ext(stamp())
    e("s_waitcnt lgkmcnt(0)")
    if pst: P.ext(stamp())
    e("s_mov_b32 s12, s4\ns_mov_b32 s13, s5\ns_mov_b32 s20, s6\ns_mov_b32 s21, s7")
    e("s_mov_b32 s4, s40\ns_add_u32 s5, s40, s99\ns_mov_b32 s6, s41\ns_sub_u32 s7, s41, s97\ns_mov_b32 s97, s39")
    TX = "s_mul_i32 s1, s100, 13\ns_add_u32 s1, s1, s34\ns_load_dword s0, s[12:13], s97\ns_load_dword s0, s[12:13], s1"
    TO = "s_mul_i32 s1, s100, 10\ns_add_u32 s1, s1, s38\ns_load_dword s0, s[8:9], s38\ns_load_dword s0, s[8:9], s1"
    if tlb: e(TX)
    if tlb > 1: e(TO)
    WPF = "s_cmp_lg_u32 s96, %d\ns_cbranch_scc1 L_nowpf\nbuffer_load_dword v255, v247, s[20:23], 0 offen\nL_nowpf:" % wpfw
    if wpf and (plan is None or "W" not in plan['a'].split()): e(WPF)
    def scal(kind):
        o = ["s_lshl_b32 s95, s43, 2", "s_add_u32 s95, s95, s96"]
        if kind == "CS":
            o += ["s_lshl_b32 s95, s95, 8", "s_getpc_b64 s[0:1]", "L_pcs:", "s_min_u32 s95, s95, L_end-L_pcs-256"]
            for k in range(256 >> sstr): o += ["s_load_dword s36, s[0:1], s95", "s_add_u32 s95, s95, %d" % (1 << sstr)]
        else:
            o += ["s_mul_i32 s95, s95, 1296", "s_and_b32 s95, s95, 0xffffff80"]
            for k in range(1408 >> sstr): o += ["s_load_dword s36, s[20:21], s95", "s_add_u32 s95, s95, %d" % (1 << sstr)]
        return [I(l) for l in o[:-1]], []
    xflag = lambda rho: xfl0 if (xfl0 is not None and rho in (0, 1, 12, 13)) else xfl
    def xload(rho, regs):
        pre = [] if rho == 0 else [I("s_add_u32 s34, s34, s100")]
        if rho == 1: pre.append(I("s_mov_b32 s14, %d" % NB))
        so = "s97" if rho == 0 else "s34"
        if defer in (1, 3):
            if rho == 1: pre = [I("s_mov_b32 s43, s14")] + pre
            if rho == 0: pre = [I("s_mov_b32 s14, s43")]
            if rho == 3: pre.append(I("s_mov_b32 s14, %d" % NB))
        rn = ar if (x45a and rho >= 4) else vr
        ld = [VM("buffer_load_dwordx%d %s, v%d, s[12:15], %s offen %s" % (4 if m < 2 else 2, rn(regs[m], 4 if m < 2 else 2), vX[m], so, xflag(rho)), "x%d_%d" % (rho, m)) for m in range(3)]
        return pre, ld
    def gsrc(g):
        g = min(g, 26); sg, r = g // 3, g % 3
        return r, (sg % 3) * 18432 + (sg // 3) * 6144
    LATE = pos is not None and v0at <= 24
    POS = pos or [sg % NS for sg in range(9)]
    def slot(g): return 3 * NS if g == 27 else 3 * POS[g // 3] + g % 3
    def best_bias(sg):
        best = None
        for b in range(max(0, POS[sg] - 3), POS[sg] + 1):
            n = 0
            while sg + n < 9 and b <= POS[sg + n] <= b + 3: n += 1
            if best is None or n > best[0]: best = (n, b)
        return 18432 * best[1]
    BIAS0 = best_bias(0)
    def wdma(u):
        g0, g1 = 2 * u, 2 * u + 1
        (r0, o0), (r1, o1) = gsrc(g0), gsrc(g1)
        if u == 13 and nodummy:
            o = [I("s_mul_i32 s39, s96, 1536"), I("s_sub_u32 s37, s101, s36"), I("s_add_u32 m0, s39, %d" % (WB + 6144 * slot(g0))), I("s_add_u32 s37, s37, s39"), I("s_add_u32 s37, s37, %d" % o0)]
            return o, [VM("buffer_load_dwordx4 v246, s[20:23], s37 offen lds", "u13"),
                       [I("s_mov_b32 exec_hi, 0"), VM("buffer_load_dwordx4 v246, s[20:23], s37 offen offset:1024 lds", "u13"), I("s_mov_b32 exec_hi, -1")]]
        sb = {(0, 1, 0): 4, (1, 2, 0): 5, (2, 0, 18432): 6, (2, 0, 6144 - 36864): 7, (2, 2, 0): 101}[(r0, r1, o1 - o0)]
        d = slot(g1) - slot(g0)
        o = [I("s_add_u32 s37, s%d, %d" % (sb, o0))]
        if d == 1: o += [I("s_add_u32 m0, s35, %d" % (WB + 6144 * slot(g0)))]
        else: o = [I("s_mul_i32 s39, s32, %d" % (6144 * (d - 1))), I("s_add_u32 s39, s39, s35"), I("s_add_u32 m0, s39, %d" % (WB + 6144 * slot(g0)))] + o
        if o[-1][1].startswith("s_add_u32 m0"): o = o[::-1]
        lds = [VM("buffer_load_dwordx4 v%d, s[20:23], s37 offen offset:%d lds" % (vW[m], 1024 * m), "u%d" % u) for m in range(3)]
        return o, lds
    XR = {0: RAW0, 1: RAW1, 2: RAWE, 3: RAWO, 4: RAWE, 5: RAWO}
    if x45a: XR[4] = [SD, SD + 4, SD + 8]; XR[5] = [SD + 12, SD + 16, SD + 10]
    def touch():
        n = (9600 + 128 + (64 << tstride) - 1) // (64 << tstride)
        pre = [I("s_mul_i32 s3, s96, s100"), I("s_add_u32 s3, s3, s34"), I("s_add_u32 s3, s3, s42"), I("s_sub_u32 s3, s3, 192"), I("s_and_b32 s3, s3, 0xffffff80"),
               I("v_lshlrev_b32 v252, %d, v0" % tstride), I("s_mov_b32 s16, s12"), I("s_mov_b32 s17, s13"), I("s_mov_b32 s18, %d" % NB), I("s_mov_b32 s19, 0x20000")]
        ld = []
        for k in range(n):
            ld += [I("v_min_u32 v253, %d, v252" % (9600 + 64 - k * (64 << tstride))), I("v_add_u32 v253, s3, v253"),
                   VM("buffer_load_dword v255, v253, s[16:19], 0 offen", "touch"), I("s_add_u32 s3, s3, %d" % (64 << tstride))]
        return pre, ld
    def touch2(r0):
        pre = [I("s_add_u32 s95, s32, %d" % r0), I("s_mul_i32 s95, s95, s100"), I("s_add_u32 s95, s95, s34"), I("s_add_u32 s95, s95, s42"),
               I("s_sub_u32 s95, s95, 192"), I("s_and_b32 s95, s95, 0xffffff80"), I("s_mul_i32 s94, s33, 4864"), I("s_add_u32 s95, s95, s94"),
               I("v_min_u32 v246, 37, v0"), I("v_lshl_add_u32 v246, v246, 7, s95"), I("s_mov_b32 s94, s14"), I("s_mov_b32 s14, %d" % NB)]
        return pre, [VM("buffer_load_dword v255, v246, s[12:15], 0 offen", "touch"), I("s_mov_b32 s14, s94")]
    def item(z):
        if z[0] == "R": return touch2(int(z[1:]))
        if z == "T": return touch()
        if z in ("CS", "WS"): return scal(z)
        if z in ("TX", "TO"): return [I(l) for l in (TX if z == "TX" else TO).split("\n")], []
        if z == "W": return [], [VM("buffer_load_dword v255, v247, s[20:23], 0 offen", "W")]
        return xload(int(z[1:]), XR[int(z[1:])]) if z[0] == 'x' else wdma(int(z[1:]))
    plan = plan or dict(a="u0 u1 x0 u2", b="x1 u3 x2 u4", prep={0: "x3", 1: "u5", 2: "u6", 4: "u7", 5: "u8", 7: "u9 u10", 10: "u11", 12: "u12", 14: "u13", 18: "x4", 20: "x5"})
    A_ops = []
    for z in plan['a'].split():
        a, b = item(z); A_ops += a + b
    if not ilv: P.ext(A_ops)
    mark = len(P.ops)
    if pst and not ilv: P.ext(stamp())
    if early: xaddr()
    HOP = "s_mov_b64 exec, 0\ns_cmp_eq_u32 s96, 0\ns_cbranch_scc1 L_stub0\ns_cmp_eq_u32 s96, 1\ns_cbranch_scc1 L_stub1\ns_cmp_eq_u32 s96, 2\ns_cbranch_scc1 L_stub2\ns_branch L_stub3\nL_back:\ns_mov_b64 exec, -1"
    if stubs == 2: e(HOP)
    if stubs == 3: e(HOP.replace("L_back", "L_back0"))
    e("s_mov_b32 s24, s8\ns_mov_b32 s25, s9\ns_mov_b32 s26, %d\ns_mov_b32 s27, 0x20000" % NB)
    if stamps: e("s_mov_b32 s28, s10\ns_mov_b32 s29, s11\ns_mov_b32 s30, 0x100000\ns_mov_b32 s31, 0x20000")
    e("s_mov_b32 s16, 0xffff0000\ns_lshl_b32 s17, s32, 31\ns_xor_b32 s17, s17, 0xbf800000")
    for m in range(3): e("v_add_u32 v%d, %d, v%d" % (vVw[1][m], VBUF, vVw[0][m]))
    e("v_and_b32 v250, 15, v0\nv_lshrrev_b32 v251, 4, v0")
    e("v_lshrrev_b32 v252, 2, v250\nv_lshl_add_u32 v252, v251, 3, v252\nv_mul_u32_u24 v252, 192, v252")
    e("v_and_b32 v253, 3, v250\nv_lshl_add_u32 v252, v253, 3, v252")
    e("v_and_b32 v253, 1, v251\nv_lshlrev_b32 v253, 5, v253")
    e("s_mul_i32 s39, s33, 96\ns_mul_i32 s37, s32, 12288\ns_add_u32 s18, s37, %d\ns_sub_u32 s19, %d, s37" % (WB + BIAS0, WB + BIAS0 + 12288))
    for t in range(3):
        e("s_add_u32 s3, s39, %d\nv_xor_b32 v248, s3, v253\nv_add_u32 v248, v248, v252" % (32 * t))
        if km == 2: e("v_add_u32 v%d, s18, v248" % (vT + t))
        else: e("v_add_u32 v%d, s18, v248\nv_add_u32 v%d, %d, v248\nv_add_u32 v%d, s19, v248" % (vT + t, vT + 3 + t, WB + BIAS0 + 6144, vT + 6 + t))
    if km == 2:
        e("v_lshrrev_b32 v252, 2, v250\nv_and_b32 v248, 3, v250\nv_lshl_add_u32 v248, v252, 3, v248\nv_mul_u32_u24 v248, 192, v248")
        e("v_mov_b32 v249, %d\nv_mov_b32 v253, s19\nv_cmp_gt_u32 vcc, 2, v251\nv_and_b32 v252, 1, v252\nv_lshlrev_b32 v252, 5, v252" % (WB + BIAS0 + 6144))
        e("v_cndmask_b32 v249, v253, v249, vcc\nv_add_u32 v248, v248, v249\nv_and_b32 v249, 1, v251\nv_lshl_add_u32 v248, v249, 4, v248")
        for t in range(3): e("s_add_u32 s3, s39, %d\nv_xor_b32 v249, s3, v252\nv_add_u32 v%d, v249, v248" % (32 * t, vT + 3 + t))
    e("v_lshrrev_b32 v252, 2, v250\nv_cmp_eq_u32 vcc, v252, v251\nv_and_b32 v253, 1, v250\nv_lshlrev_b32 v253, 4, v253\nv_mov_b32 v248, 0x3f00\nv_lshlrev_b32 v248, v253, v248")
    e("v_cndmask_b32 v248, 0, v248, vcc\nv_and_b32 v252, 2, v250\nv_cmp_eq_u32 vcc, 0, v252\ns_lshl_b32 s3, s32, 15\nv_lshlrev_b32 v249, v253, s3")
    e("v_cndmask_b32 v%d, 0, v248, vcc\nv_cndmask_b32 v%d, v248, 0, vcc" % (SEL + 2, SEL + 3))
    e("v_xor_b32 v%d, v249, v%d\nv_xor_b32 v%d, v249, v%d" % (SEL + 6, SEL + 2, SEL + 7, SEL + 3))
    for k in (0, 1, 4, 5): e("v_mov_b32 v%d, 0" % (SEL + k))
    if km == 2:
        e("v_lshrrev_b32 v252, 3, v250\nv_and_b32 v248, 1, v251\nv_cmp_eq_u32 vcc, v252, v248\nv_mov_b32 v248, 0x3f00\nv_or_b32 v249, s3, v248")
        e("v_cmp_gt_u32 s[0:1], 2, v251\nv_bfe_u32 v252, v250, 1, 2\ns_nop 0\nv_cndmask_b32 v248, v248, v249, s[0:1]\nv_lshlrev_b32 v248, v253, v248\nv_cndmask_b32 v248, 0, v248, vcc")
        for k in range(4): e("v_cmp_eq_u32 vcc, %d, v252\ns_nop 1\nv_cndmask_b32 v%d, 0, v248, vcc" % (k, SEL + 6 + k))
    elif km: e("v_mov_b32 v%d, v%d\nv_mov_b32 v%d, v%d" % (SEL + 8, SEL + 2, SEL + 9, SEL + 3))
    else: e("v_mov_b32 v%d, 0\nv_mov_b32 v%d, 0" % (SEL + 8, SEL + 9))
    e("v_mul_u32_u24 v252, 576, v250")
    e("s_add_u32 s3, s32, 1\ns_mul_i32 s18, s3, %d\ns_mul_i32 s19, s32, %d" % (VROW, 3 * VROW))
    e("v_lshrrev_b32 v253, 1, v250\nv_and_b32 v253, 2, v253\nv_xor_b32 v253, v253, v251\nv_lshl_add_u32 v248, v253, 4, v252")
    e("v_add_u32 v%d, s18, v248\nv_add_u32 v%d, s19, v248" % (vF[0][0], vF[1][0]))
    e("v_add_u32 v253, 1, v250\nv_lshrrev_b32 v253, 1, v253\nv_and_b32 v253, 2, v253\nv_xor_b32 v253, v253, v251\nv_lshl_add_u32 v248, v253, 4, v252")
    e("v_add_u32 v%d, s18, v248\nv_add_u32 v%d, s19, v248" % (vF[0][1], vF[1][1]))
    if ilv:
        su = [('i', o[1].replace("s39", "s40").replace("s37", "s41")) for o in P.ops[mark:]]; del P.ops[mark:]
        nvm = sum(o[0] == 'vm' for o in A_ops); k = 0
        for o in A_ops:
            P.ext([o])
            if o[0] == 'vm':
                k += 1; n = len(su) // (nvm - k + 1) if k < nvm else len(su)
                P.ext(su[:n]); su = su[n:]
    LA = Prog(); la = LA.i if lateaddr else e
    if lateaddr: la("v_and_b32 v250, 15, v0\nv_lshrrev_b32 v251, 4, v0")
    la("s_mul_i32 s3, s96, 9216\ns_add_u32 s3, s3, %d\nv_lshl_add_u32 v%d, v0, 4, s3" % (EX, vEw))
    la("s_xor_b32 s3, s96, 2\ns_mul_i32 s3, s3, 9216\ns_add_u32 s3, s3, %d\nv_lshl_add_u32 v%d, v0, 4, s3" % (EX, vEr))
    la("s_mul_i32 s39, s32, %d\ns_mul_i32 s3, s33, 96\ns_add_u32 s39, s39, %d\ns_add_u32 s3, s3, s39" % (STGROW, STG))
    la("v_mul_u32_u24 v252, 592, v250\nv_lshl_add_u32 v252, v251, 3, v252\nv_add_u32 v%d, s3, v252" % vS)
    la("s_mul_i32 s3, s33, 288\nv_add_u32 v250, s3, v0")
    la("v_lshl_add_u32 v%d, v250, 4, s42" % vG)
    la("v_add_u32 v252, 4096, v%d\nv_bfrev_b32 v253, 1\nv_cmp_gt_u32 vcc, 32, v0\ns_nop 1\nv_cndmask_b32 v%d, v253, v252, vcc" % (vG, vG4))
    for m in range(5):
        if m == 4: la("v_min_u32 v250, 575, v250")
        la("v_mul_u32_u24 v251, 1821, v250\nv_lshrrev_b32 v251, 16, v251\nv_add_u32 v251, v251, v250\nv_lshl_add_u32 v%d, v251, 4, s39\nv_add_u32 v250, 64, v250" % vR[m])
    if pst: P.ext(stamp())
    if stubs == 1: e(HOP)
    if pst: P.ext(stamp())
    if stubs == 3: e("s_cmp_ge_u32 s96, 2\ns_cbranch_scc1 L_nohop\ns_mov_b64 exec, 0\ns_cmp_eq_u32 s96, 0\ns_cbranch_scc1 L_stub4\ns_branch L_stub5\nL_back:\ns_mov_b64 exec, -1\nL_nohop:")
    for z in plan['b'].split():
        a, b = item(z); P.ext(a); P.ext(b)

    free = [ST0 + 2 * k for k in range(24)] + [124, 126, 128, 130]
    stE = [None] * 10; stO = [None] * 10
    voq = [(VOUT + 4 * k, None) for k in range(4)]
    dw = [(0, i) for i in range(4)] + [(1, i) for i in range(4)] + [(2, i) for i in range(2)]
    def unpack(dst, src): return [Op('V', I("v_lshlrev_b32 v%d, 16, v%d" % (dst, src))), Op('V', I("v_and_b32 v%d, s16, v%d" % (dst + 1, src)))]
    def addsub(dst, a, b, sub, pk):
        if pk: return [Op('V', I("v_pk_add_f32 %s, %s, %s%s" % (vr(dst, 2), vr(a, 2), vr(b, 2), " neg_lo:[0,1] neg_hi:[0,1]" if sub else "")))]
        return [Op('V', I("v_%s_f32 v%d, v%d, v%d" % ("sub" if sub else "add", dst + k, a + k, b + k))) for k in range(2)]
    def cvt(dst, src): return Op('V', I("v_cvt_pk_bf16_f32 v%d, v%d, v%d" % (dst, src, src + 1)))
    def transform(tt, pk=False, part=None):
        val = []; wr = []; ld = []
        nxt = tt + 1 <= 5 and (tt >= 1 or x45 == 'v0')
        def reload(rho, regs, m, dep):
            nd = 4 if m < 2 else 2
            if nxt: ld.append(Op('R', VM("buffer_load_dwordx%d %s, v%d, s[12:15], %s offen %s" % (nd, vr(regs[m], nd), vX[m], "s18" if rho % 2 == 0 else "s19", xflag(rho)), "x%d_%d" % (rho, m)), deps=[(dep, 1)], name="ld%d_%d" % (rho, m)))
        def vrow(m, a, f):
            nd = 4 if m < 2 else 2
            q, last = voq.pop(0)
            later = []
            for i in range(nd):
                dst, x, y, sub = f(4 * m + i)
                if dst is None: dst = free.pop(0)
                val.extend(addsub(dst, x, y, sub, pk)); c = cvt(q + i, dst)
                if pk and pkgrp: later.append((c, dst))
                else: val.append(c); free.append(dst)
                if i == 0 and last: c.deps.append((last, 0))
            for c_, dst in later: val.append(c_); free.append(dst)
            o = Op('W', LG("ds_write_b%d v%d, %s offset:%d" % (32 * nd, vVw[tt % 2][m], vr(q, nd), a * VROW), "vw%d%s" % (tt, "b" if part in ('b', 'z', 'o') else "")), deps=[(c, 1)], cost=8 + 4 * nd, name="vw%d_%d_%d" % (tt, m, a))
            wr.append(o); voq.append((q, o))
        def epart(m):
            nd = 4 if m < 2 else 2; ne = {}
            val.append(Op('S', WV("x%d_%d" % (2 * tt + 2, m)), name="wx"))
            if x45a and tt == 1: val.extend(Op('V', I("v_accvgpr_read_b32 v%d, a%d" % (RAWE[m] + i, XR[4][m] + i))) for i in range(nd))
            for i in range(nd): ne[4 * m + i] = free.pop(0); val.extend(unpack(ne[4 * m + i], RAWE[m] + i))
            reload(2 * tt + 4, RAWE, m, val[-1])
            if part in (None, 'e') or defer == 2: vrow(m, 0, lambda d: (stE[d], stE[d], ne[d], True))
            vrow(m, 1, lambda d: (None, stO[d], ne[d], False))
            vrow(m, 2, lambda d: (None, stO[d], ne[d], True))
            for d in ne: stE[d] = ne[d]
        def opart(m):
            nd = 4 if m < 2 else 2; no = {}
            val.append(Op('S', WV("x%d_%d" % (2 * tt + 3, m)), name="wx"))
            if x45a and tt == 1: val.extend(Op('V', I("v_accvgpr_read_b32 v%d, a%d" % (RAWO[m] + i, XR[5][m] + i))) for i in range(nd))
            for i in range(nd): no[4 * m + i] = free.pop(0); val.extend(unpack(no[4 * m + i], RAWO[m] + i))
            reload(2 * tt + 5, RAWO, m, val[-1])
            vrow(m, 3, lambda d: (stO[d], no[d], stO[d], True))
            for d in no: stO[d] = no[d]
        def zpart(m):
            nd = 4 if m < 2 else 2; e0 = {}
            val.append(Op('S', WV("x0_%d" % m), name="wx"))
            for i in range(nd): e0[4 * m + i] = free.pop(0); val.extend(unpack(e0[4 * m + i], RAW0[m] + i))
            vrow(m, 0, lambda d: (e0[d], e0[d], stE[d], True))
        if part == 'z':
            for m in range(3): zpart(m)
        elif part == 'e':
            for m in range(3): epart(m)
        elif part == 'o':
            for m in range(3): opart(m)
        elif part == 'a':
            for m in range(3): epart(m)
        elif part == 'b':
            for m in range(3 if defer == 1 else 0): zpart(m)
            for m in range(3): opart(m)
        elif tt < emajor:
            for m in range(3): epart(m)
            for m in range(3): opart(m)
        else:
            for m in range(3): epart(m); opart(m)
        return val, wr, ld
    def v0_block():
        if stubs == 4: e(HOP)
        for z in plan.get('pre', "").split():
            a, b = item(z); P.ext(a); P.ext(b)
        q0 = []
        for z in plan.get('v0', "").split():
            a, b = item(z); q0 += [a + b[:1], b[1:2], b[2:]]
        for rho, st_, raw in ((0, stE, RAW0), (1, stO, RAW1))[(1 if defer in (1, 3) else 0):]:
            for m in range(3):
                P.wv("x%d_%d" % (rho, m))
                for i in range(4 if m < 2 else 2):
                    d = 4 * m + i; st_[d] = free.pop(0)
                    for o in unpack(st_[d], raw[m] + i): P.ext(o.items)
        if x45 == 'v0': e("s_add_u32 s18, s34, s100\ns_add_u32 s19, s18, s100")
        val, wr, ld = transform(0, pk=usepk, part='a' if defer else None)
        if x4late and not defer:
            waits = [o for o in val if o.kind == 'S']
            for k, o in enumerate(ld[:3]): o.deps = [(waits[min(2 + x4late + (k if x4late == 1 else 0), 5)], 1)]
        if x4late == 2 and defer:
            for o in ld: o.deps = [(val[-1], 1)]
        wr = ld + wr
        done = set()
        for n, o in enumerate(val):
            assert all(d.gap is not None for d, k in o.deps)
            P.ext(o.items); done.add(id(o))
            if q0 and n % vstep == vstep - 1: P.ext(q0.pop(0))
            for w in list(wr):
                if id(w.deps[0][0]) in done and w.deps[0][0] is not o: P.ext(w.items); wr.remove(w); w.gap = -1; break
        for w in wr: P.ext(w.items); w.gap = -1
        for z in q0: P.ext(z)

    def fragreads(n):
        t, b = n // 6, n % 6
        return [Op('R', LG("ds_read_b128 %s, v%d offset:%d" % (ar(FB[n % 2] + 4 * p), vF[b // 3][p // 3], (t % 2) * VBUF + 192 * p + 64 * (b % 3)), "f%d" % n), name="f%d" % n) for p in range(5)]
    bias = [BIAS0]
    def trreads(f):
        sg, t = f // 3, f % 3
        off = 18432 * POS[sg]; pre = []
        if not (0 <= off - bias[0] <= 65535 - 768):
            nb = best_bias(sg)
            pre = [Op('V', I("v_add_u32 v%d, %d, v%d" % (vT + k, (nb - bias[0]) & 0xffffffff, vT + k))) for k in range(6 if km == 2 else 9)]; bias[0] = nb
        tm = TM + 8 * (f % 3)
        dst = [ar(U2A + 4 * f, 2), ar(U2A + 4 * f + 2, 2), vr(tm, 2), vr(tm + 2, 2), vr(tm + 4, 2), vr(tm + 6, 2)]
        if km == 2:
            return pre, [Op('R', LG("ds_read_b64_tr_b16 %s, v%d offset:%d" % (dst[u], vT + t, off - bias[0] + 768 * u), "tr%d" % f)) for u in range(2)] + \
                        [Op('R', LG("ds_read_b128 %s, v%d offset:%d" % (vr(tm + 4 * u), vT + 3 + t, off - bias[0] + 768 * u), "tr%d" % f)) for u in range(2)]
        if km: dst[3], dst[4] = dst[4], dst[3]
        return pre, [Op('R', LG("ds_read_b64_tr_b16 %s, v%d offset:%d" % (dst[k], vT + 3 * (k // 2) + t, off - bias[0] + 768 * (k % 2)), "tr%d" % f)) for k in range(6)]
    def prep_mf(f):
        lo, hi = DD[f % 2]; tm = TM + 8 * (f % 3)
        sl, sh, nl, nh = vr(SEL + 2), vr(SEL), vr(SEL + 6), vr(SEL + 4)
        if km == 2: return ["%s %s, %s, %s, 0" % (MF, vr(lo), sl, u2(f)), "%s %s, %s, %s, 0" % (MF, vr(hi), sh, u2(f)),
                            "%s %s, %s, %s, %s" % (MF, vr(lo), vr(tm), nl, vr(lo)), "%s %s, %s, %s, %s" % (MF, vr(hi), vr(tm + 4), nl, vr(hi))]
        if km: return ["%s %s, %s, %s, 0" % (MF, vr(lo), sl, u2(f)), "%s %s, %s, %s, 0" % (MF, vr(hi), sh, u2(f)),
                       "%s %s, %s, %s, %s" % (MF, vr(lo), nl, vr(tm), vr(lo)), "%s %s, %s, %s, %s" % (MF, vr(hi), nl, vr(tm + 4), vr(hi))]
        return ["%s %s, %s, %s, 0" % (MF, vr(lo), sl, u2(f)), "%s %s, %s, %s, 0" % (MF, vr(hi), sh, u2(f)),
                "%s %s, %s, %s, %s" % (MF, vr(lo), nl, vr(tm), vr(lo)), "%s %s, %s, %s, %s" % (MF, vr(hi), nh, vr(tm), vr(hi)),
                "%s %s, %s, %s, %s" % (MF, vr(lo), sl, vr(tm + 4), vr(lo)), "%s %s, %s, %s, %s" % (MF, vr(hi), sh, vr(tm + 4), vr(hi))]
    def prep_cvt(f, g0):
        lo, hi = DD[f % 2]; k, b = u1loc[f]
        d = b if k == 'v' else TMP
        c = [cvt(d, lo), cvt(d + 1, lo + 2), cvt(d + 2, hi), cvt(d + 3, hi + 2)]
        for n, o in enumerate(c):
            if km: o.early = g0 + (5 if n < 2 else 6); o.dead = g0 + (5, 6, 6, 7)[n]
            else: o.early = g0 + (7 if n < 2 else 8); o.dead = g0 + 8 + n
        if k == 'a':
            w = [Op('V', I("v_accvgpr_write_b32 a%d, v%d" % (b + n, d + n))) for n in range(4)]
            for n, o in enumerate(w): o.dead = g0 + ((8, 8, 9, 9)[n] if km else 13 + n)
            c += w
        return c
    need_u = lambda sg: "u%d" % ((3 * sg + 2) // 2)
    if v0at == 0:
        v0_block()
        for z in plan.get('c', "").split():
            a, b = item(z); P.ext(a); P.ext(b)
    P.wv(need_u(bars.get(0, 0) if bars else 0)); e("s_barrier")
    P.ext(stamp())
    for f in (0, 1):
        for o in trreads(f)[1]: P.ext(o.items)
    nextpin = [0]; NM = 4 if km else 6
    cstream = []
    def prep_span(f0, f1):
        mf = []; ops = []; pin = {}
        rd = []
        for f in range(f0, f1):
            g = NM * f
            mf += prep_mf(f)
            if f == f0: P.wl("tr%d" % f)
            else: pin.setdefault(g - 1, []).append(WL("tr%d" % f))
            if f + 2 < 27:
                if (f + 2) % 3 == 0 and (bars is None or (f + 2) // 3 in bars):
                    sg = (f + 2) // 3
                    tags = [need_u(bars[sg] if bars else sg)]
                    b = [WV(*tags), I("s_barrier")]
                    if not LATE and (f == v0at + 1 or f == v0at or f == v0at + 2): b = [WL("vw0")] + b
                    if f == f0: P.ext(b)
                    else: pin.setdefault(g - 1, []).extend(b)
                pre, r = trreads(f + 2)
                for o in pre: o.early = g - 1 if f > f0 else g; o.dead = o.early
                for n, o in enumerate(r): o.early = o.dead = g + ((0, 0, 1, 2, 2, 3)[n] if km == 1 else n)
                chain0(r)
                if pre:
                    if f == f0:
                        for o in pre: P.ext(o.items)
                    else:
                        ops += pre; r[0].deps = [(o, 1) for o in pre]
                        for o in pre: o.deps.append((rd[-1], 0))
                rd += r
            for z in plan['prep'].get(f, "").split():
                a, b = item(z)
                gp = max(g, nextpin[0]); assert gp + 1 + 2 * dstep < NM * f1
                pin.setdefault(gp, []).extend(a)
                for n, o in enumerate(b): pin.setdefault(gp + 1 + n * dstep, []).extend(o if isinstance(o, list) else [o])
                nextpin[0] = gp + max(len(b) + 1, len(b) * dstep)
            if LATE and f == 26:
                pin[g - 1].extend([WL("vw0"), I("s_barrier")])
                for n, o in enumerate(fragreads(0)): pin.setdefault(g + (max(n - 1, 0) if km else n), []).extend(o.items)
            if pfine and f in pfine: pin.setdefault(g + NM - 1, []).extend(stamp())
            c = prep_cvt(f, g)
            if cstream: c[0].deps.append((cstream[-1], 0))
            chain(c); cstream.extend(c)
        if laprep and f0 == 0:
            ren = lambda t_: re.sub(r"\bv25([0-3])\b", lambda m_: "v%d" % (152 + int(m_.group(1))), t_).replace("s39", "s1").replace("s3,", "s0,").replace(", s3", ", s0").replace("s03", "s33").replace("s02", "s32")
            lat_ = [Op('V' if o[1].startswith("v_") else 'S', I(ren(o[1]))) for o in LA.ops]; LA.ops = []
            chain(lat_); pace(lat_, 2, 60); ops += lat_
        ops += rd + [o for o in cstream if o.gap is None]
        out, est, pend, late = schedule(mf, ops, pin, g0=NM * f0)
        P.ext(out)
        assert all(o in cstream for o in pend), [o.items for o in pend]
        if verbose: print("prep", f0, f1, sum(est), late)
        return pend
    if v0at == 0: pend = []
    else: pend = prep_span(0, v0at)
    e("s_nop 7")
    for o in pend: P.ext(o.items); o.gap = -1
    if v0at == 27:
        P.ext(stamp())
        if pos is None: e("s_barrier")
    if v0at > 0: v0_block()
    P.ext(stamp())
    if v0at < 27: pend = prep_span(v0at, 27)
    else:
        pend = []
        for z in ("x4", "x5"):
            if not x45a and x45 != 'v0': a, b = item(z); P.ext(a); P.ext(b)
        P.wl("vw0"); e("s_barrier")
    if defer: e("s_add_u32 s18, s18, s98")
    elif x45 == 'v0': e("s_add_u32 s18, s18, s98\ns_add_u32 s19, s19, s98")
    else: e("s_add_u32 s18, s34, s100\ns_add_u32 s19, s18, s100")
    if v0at < 27: P.ext(stamp())

    mf = []; lastw = {}; QS = [(188, 192, 196, 200), (168, 172, 176, 180), (188, 192, 196, 200), (168, 172, 176), (180, 184, 228), (188, 192, 196)]
    SB5 = [((0, 1), 0), ((0, 1), 1), ((0, 1), 2), ((2,), 0), ((2,), 1), ((2,), 2)]; ST5 = [81, 99, 117, 135, 144, 153]
    allp = [(p, tl, s_) for p in range(3) for tl in range(3) for s_ in range(3)]
    orders = {'pts': allp, 'B': sorted(allp, key=lambda x: (x[0] + x[2], x[2], x[1])), 'A': sorted(allp, key=lambda x: (x[2], x[1], x[0])),
              'tps': sorted(allp, key=lambda x: (x[1], x[0], x[2])), 'pst': sorted(allp, key=lambda x: (x[0], x[2], x[1])),
              'Az': [(p if (3 * s_ + tl) % 2 == 0 else 2 - p, tl, s_) for s_ in range(3) for tl in range(3) for p in range(3)]}
    for t in range(6):
        for b in range(6):
            n = 6 * t + b; kc = b % 3; seen = set()
            if split5 and n >= 33:
                if n > 33: continue
                for j, (ps, kc) in enumerate(SB5):
                    for p in ps:
                        for tl in range(3):
                            for s_ in range(3):
                                k = 3 * p + tl; d = vr(AB + 4 * k)
                                lastw[(2, k)] = len(mf) % 162
                                mf.append("%s %s, %s, %s, %s" % (MF, d, u2(3 * (3 * kc + s_) + tl), ar(QS[j][p + s_ - ps[0]]), vr(AA + 4 * k) if kc == 0 and s_ == 0 else d))
                continue
            for p, tl, s_ in orders[morder if (kc < 2 or not lastpts) else 'pts']:
                k = 3 * p + tl; first = kc == 0 and k not in seen; seen.add(k)
                f = 3 * (3 * kc + s_) + tl
                if b < 3: d = vr(AA + 4 * k); c = "0" if first else d; u = u1(f)
                else: d = vr(AB + 4 * k); c = vr(AA + 4 * k) if first else d; u = u2(f)
                lastw[(b // 3, k)] = len(mf) % 162
                mf.append("%s %s, %s, %s, %s" % (MF, d, u, ar(FB[n % 2] + 4 * (p + s_)), c))
    ops = []; pin = {}
    if not LATE:
        for o in fragreads(0): P.ext(o.items)
        if defer == 3:
            assert not pend
            val, wr, _ = transform(0, pk=usepk, part='z')
            for o in val:
                P.ext(o.items); o.gap = -1
                for w in list(wr):
                    if w.deps[0][0].gap is not None and w.deps[0][0] is not o: P.ext(w.items); w.gap = -1; wr.remove(w)
            for w in wr: P.ext(w.items); w.gap = -1
    else: e("s_nop 3")
    if pend or not strict: e("s_nop 3")
    for o in pend: P.ext(o.items); o.gap = -1
    P.wl("f0")
    if v0at < 27 and not LATE: e("s_barrier")
    if onebar:
        la("v_add_u32 v248, 18944, v%d\ns_lshl_b32 s3, s96, 8\ns_add_u32 s3, s3, 151552\nv_lshl_add_u32 v249, v0, 2, s3\nv_xor_b32 v253, 0x200, v249\nv_mov_b32 v254, 0" % vS)
    lat = [Op('V' if o[1].startswith("v_") else 'S', o) for o in LA.ops]
    if lat: chain(lat); pace(lat, 0, 40); ops += lat
    if onebar: ops.append(Op('W', LG("ds_write_b32 v249, v254", "ew0"), deps=[(lat[-1], 1)], cost=12, dead=50))
    X1 = [162 * t + x1pos for t in range(5)] + [162 * 5 + (x1last if midadd else 112)]
    prevval = prevadv = None
    emulw, emulf = {0: (9, 4), 1: (3, 2), 2: (1, 2)}[emul]
    if defer:
        val, wr, ld = transform(0, part='b')
        val[0].early = t0lo; chain(val); pace(val, t0lo, xbpos - 3 - wmargin); chain(wr); chain(ld)
        for o in wr: o.dead = min(o.deps[0][0].dead + 8, xbpos - wmargin)
        for o in ld: o.dead = o.deps[0][0].dead + 4
        prevadv = Op('S', I("s_add_u32 s19, s19, s98"), deps=[(ld[-1], 1)], dead=ld[-1].dead + 3)
        ops += val + wr + ld + [prevadv]; prevval = val[-1]; vw0b = wr
        pin.setdefault(xbpos, []).extend([WL("vw0b"), I("s_barrier")])
    padv = {'o': prevadv} if prevadv else {}
    rq = [(RECV + 4 * k, None) for k in range(3)]
    tail = []; prevst = None; spins = []; allso = []; lastew = {}
    vS2, vFw, vFr, vFc, vFt = 248, 249, 253, 254, 255
    for t in range(6):
        base = 162 * t
        for b in range(6):
            n = 6 * t + b + 1
            if n == 36: break
            if split5 and n >= 33:
                if n > 33: continue
                prev = None
                for j, (ps, kc) in enumerate(SB5):
                    p = ps[0]; st = base + ST5[j]
                    r = [Op('R', LG("ds_read_b128 %s, v%d offset:%d" % (ar(q_), vF[1][(p + i) // 3], (t % 2) * VBUF + 192 * (p + i) + 64 * kc), "g%d" % j), name="g") for i, q_ in enumerate(QS[j])]
                    lo = base + (x2pos + 1, 81, 99, 117, 117, 135)[j]
                    for i, o in enumerate(r): o.early = lo; o.dead = st - 11 + i
                    if prev: r[0].deps.append((prev, 1))
                    chain(r); prev = r[-1]; ops += r
                    pin.setdefault(st - 1, []).append(WL("g%d" % j))
                continue
            r = fragreads(n); st = base + 27 * b
            if emul: r = fragreads(n) + r
            lo = st + 1 if b < 5 else X1[t] + 1
            if defer and n == 3: lo = max(lo, xbpos + 1)
            if shift and n > 3 and n % 6 == 3: lo = max(lo, base + x2pos + 1)
            for i, o in enumerate(r): o.early = lo; o.dead = max(lo + fstep * i * (5 / len(r) if b == 5 else 1), st + 19 - fstep * (len(r) - 1 - i))
            chain(r); ops += r
            pin.setdefault(st + 26, []).append(WL("f%d" % n))
        tags = ["ew%d" % t]
        if t < 5 and shift:
            for part in ('e', 'o'):
                val, wr, ld = transform(t + 1, part=part)
                if prevval: val[0].deps.append((prevval, 1))
                prevval = val[-1]; chain(val); chain(wr)
                if part == 'e':
                    val[0].early = t1lo if t == 0 else 0
                    pace(val, base + (elo if t else max(elo, t1lo)), base + x1pos - 3 - wmargin)
                    for o in wr: o.early = base - 161 + x1pos; o.dead = min(o.deps[0][0].dead + 8, base + x1pos - wmargin)
                else:
                    pace(val, base + x1pos - 3 - wmargin, base + 162 + oend)
                    for o in wr: o.dead = min(o.deps[0][0].dead + 8, base + 162 + x2pos - wmargin)
                for o in ld: o.dead = o.deps[0][0].dead + 6
                if ld:
                    r_ = "s18" if part == 'e' else "s19"
                    adv = Op('S', I("s_add_u32 %s, %s, s98" % (r_, r_)), deps=[(ld[-1], 1)], dead=ld[-1].dead + 4)
                    chain(ld); ops.append(adv)
                    if part in padv: ld[0].deps.append((padv[part], 1))
                    padv[part] = adv
                ops += val + wr + ld
            tags.append("vw%d" % (t + 1))
        elif t < 5:
            val, wr, ld = transform(t + 1)
            lo = base - 161 + x1pos if t > 0 else t1lo
            for o in val + wr: o.early = lo
            if tearly and t > 0:
                for o in val: o.early = lo - 30
                val[0].deps.append((prevval, 1))
            elif prevval: val[0].deps.append((prevval, 1))
            prevval = val[-1]
            chain(val); pace(val, lo + (tdelay if t > 0 else 0), base + x1pos - 3 - wmargin)
            for o in wr: o.dead = min(o.deps[0][0].dead + 8, base + x1pos - wmargin)
            chain(wr)
            for o in ld: o.dead = o.deps[0][0].dead + 6
            if ld:
                adv = Op('S', [I("s_add_u32 s18, s18, s98"), I("s_add_u32 s19, s19, s98")], deps=[(ld[-1], 1)], dead=ld[-1].dead + 4)
                chain(ld); ops.append(adv)
                if prevadv: ld[0].deps.append((prevadv, 1))
                prevadv = adv
            ops += val + wr + ld
            tags.append("vw%d" % (t + 1))
        ew = [Op('W', LG("ds_write_b128 v%d, %s offset:%d" % (vEw, vr(AA + 4 * k), 1024 * k), "ew%d" % t), early=base + max(lastw[(0, k)] + 3, x2pos + 1), name="ew") for k in range(9)]
        if onebar and t > 0:
            fr = Op('R', LG("ds_read_b32 v%d, v%d" % (vFt, vFr), "fr%d" % t), early=base + chkpos - 10, dead=base + chkpos)
            c1 = Op('S', WL("fr%d" % t), deps=[(fr, rlat)], dead=base + chkpos + rlat + 2)
            c2 = Op('V', I("v_readfirstlane_b32 s3, v%d" % vFt), deps=[(c1, 0)], dead=c1.dead)
            c3 = Op('S', [I("s_cmp_ge_u32 s3, %d" % t), I("s_cbranch_scc0 L_spin%d" % t), I("L_go%d:" % t)], deps=[(c2, 1)], dead=c1.dead + 2)
            ew[0].deps.append((c3, 1)); ops += [fr, c1, c2, c3]
            spins.append("L_spin%d:\nds_read_b32 v%d, v%d\ns_waitcnt lgkmcnt(0)\nv_readfirstlane_b32 s3, v%d\ns_nop 3\ns_cmp_ge_u32 s3, %d\ns_cbranch_scc0 L_spin%d\ns_branch L_go%d" % (t, vFt, vFr, vFt, t, t, t))
        if onebar and t > 0: tags.append("sw%d" % (t - 1))
        if split05 and t in (0, 5):
            ew = [Op('W', LG("ds_write_b64 v%d, %s offset:%d" % (vEw, vr(AA + 4 * k + 2 * u, 2), 1024 * k + 8 * u), "ew%d" % t), early=ew[k].early, cost=16, name="ew") for k in range(9) for u in range(2)]
        if emul: ew = ew[:emulw]
        lastew[t] = ew[-1]
        chain(ew); pace(ew, base + (ewlo if t < 5 else 60), X1[t] - wmargin); ops += ew
        pin.setdefault(X1[t], []).extend([WL(*tags), I("s_barrier")])
        X2 = base + 162 + x2pos
        ev = []; er = []; cvs = []; ec = []; pre5 = []; post5 = []; er5 = {}; fm5 = {}; q5 = {}
        if t == 5 and split5: rq = rq + [(168 + 4 * k, prevval) for k in range(6)]
        for k in range(9):
            q, last = rq.pop(0)
            r = Op('R', LG("ds_read_b128 %s, v%d offset:%d" % (vr(q), vEr, 1024 * k), "er%d_%d" % (t, k)), deps=[(last, 1)], early=X1[t] + 1, name="er")
            w = Op('S', WL("er%d_%d" % (t, k)), deps=[(r, rlat)], early=base + lastw[(1, k)] + 3, name="wer")
            fm = [Op('V', I("v_fma_f32 v%d, v%d, s17, v%d" % (AB + 4 * k + i, q + i, AB + 4 * k + i))) for i in range(4)]
            c = [cvt(AB + 4 * k, AB + 4 * k), cvt(AB + 4 * k + 1, AB + 4 * k + 2)]
            if t == 5 and split5:
                if k >= 6:
                    fm = [Op('V', I("v_fma_f32 v%d, v%d, s17, v%d" % (AA + 4 * k + i, q + i, AA + 4 * k + i))) for i in range(4)]
                    first = base + 135 + 3 * (k - 6); w.early = 0
                else:
                    first = base + 117 + 3 * k; w.early = base + 104 + 3 * k
                w.dead = first - 6
                for i, o in enumerate(fm): o.dead = first - 5 + i; o.lim = first - 2
                for i, o in enumerate(c): o.early = base + lastw[(2, k)] + 3; o.dead = o.early + i
                c[0].deps.append((fm[-1], 1)); pre5.append([w] + fm); ec += c
                r.dead = min(w.dead - rlat - 1, X1[t] + 3 + 2 * k)
                er5[k] = r; cvs.append(c[1]); fm5[k] = fm[-1]; q5[k] = q
                rq.append((q, None)); continue
            if t == 5 and midadd:
                w.early = base + 113 + 3 * k; w.dead = base + 128 + 3 * k; r.dead = w.dead - rlat - 1
                for i, o in enumerate(fm): o.dead = base + 130 + 3 * k + i
                for i, o in enumerate(c): o.early = base + lastw[(1, k)] + 3; o.dead = o.early + i
                c[0].deps.append((fm[-1], 1)); ec += c; c_ = []
            else: c_ = c
            if emul and k >= emulw and not (t == 5 and midadd):
                fm = fm[:emulf]; rq.insert(0, (q, last)); ev += fm + c_; cvs.append(c[1]); fm[0].early = w.early; continue
            ev += [w] + fm + c_; er.append(r); cvs.append(c[1]); rq.append((q, fm[-1]))
        if t == 5 and split5:
            ev = sum(pre5, [])
            seq = list(range(9)); er = [er5[k] for k in seq]
        chain(ev); chain(er)
        if t == 5 and split5: chain(ec); mid = [o for o in sum(pre5, []) if o.kind == 'V']
        elif t == 5 and midadd: chain(ec); mid = [o for o in ev if o.kind == 'V']
        else:
            pace(ev, X1[t] + 3 + rlat, X2 - 3 - wmargin)
            for k, r in enumerate(er): r.dead = ev[7 * k].dead - rlat - 1
        if onebar and t < 5:
            f1 = Op('V', I("v_mov_b32 v%d, %d" % (vFc, t + 1)), early=X1[t] + 1, dead=er[8].dead)
            f2 = Op('W', LG("ds_write_b32 v%d, v%d" % (vFw, vFc), "fw"), deps=[(er[8], 1), (f1, 1)], cost=12, dead=er[8].dead + 4)
            ops += [f1, f2]
        vS_ = vS2 if (onebar and t % 2) else vS
        so_ = " offset:18944" if (onebar and t % 2) else ""
        XS = X1[t + 1] if (onebar and t < 5) else X2
        off = lambda k: 24 * (k // 3) + 4 * (k % 3)
        sw = [Op('W', LG("ds_write2_b64 v%d, %s, %s offset0:%d offset1:%d" % (vS_, vr(AB + 8 * k, 2), vr(AB + 8 * k + 4, 2), off(2 * k), off(2 * k + 1)), "sw%d" % t), deps=[(cvs[2 * k + 1], 1)], name="sw") for k in range(4)]
        sw.append(Op('W', LG("ds_write_b64 v%d, %s offset:%d" % (vS_, vr(AB + 32, 2), 8 * off(8)), "sw%d" % t), deps=[(cvs[8], 1)], cost=16, name="sw"))
        for o in sw: o.dead = min(o.deps[0][0].dead + 5, X2 - wmargin)
        chain(sw)
        sr = [Op('R', LG("ds_read_b128 %s, v%d%s" % (ar(SD + 4 * m), vR[m], so_), "sr%d_%d" % (t, m)), early=XS + (stlo if onebar and t < 4 else 1), dead=XS + (stlo + 20 if onebar and t < 4 else 6) + 4 * m, name="sr") for m in range(5)]
        if onebar and t < 4: XS += stlo + 14
        for m in range(5):
            if prevst: sr[m].deps.append((prevst[2 * m + 1], 1))
        chain(sr)
        so = []
        for m in range(5):
            w = Op('S', WL("sr%d_%d" % (t, m)), deps=[(sr[m], slat)], dead=XS + (24 + 12 * m if t < 4 or not (onebar or st4) else 16 + 6 * m), name="wsr")
            a = "v%d, s[24:27], s38 offen offset:%d" % (vG, 1024 * m) if m < 4 else "v%d, s[24:27], s38 offen" % vG4
            s_ = Op('W', VM("buffer_store_dwordx4 %s, %s %s" % (ar(SD + 4 * m), a, stflags), "st"), deps=[(w, 1)], early=XS + (14 + 10 * m if t < 4 or not (onebar or st4) else 10 + 5 * m), dead=XS + (28 + 12 * m if t < 4 or not (onebar or st4) else 18 + 6 * m), name="st")
            so += [w, s_]
        so.append(Op('S', I("s_add_u32 s38, s38, s98"), deps=[(so[-1], 1)], dead=so[-1].dead + 6))
        if prevst: so[1].deps.append((prevst[-1], 0))
        prevst = so
        ops += ev + er + sw + ec
        if t < 5:
            if not onebar: pin.setdefault(X2, []).extend([WL(*(["sw%d" % t] + (["vw%db" % (t + 1)] if shift else []))), I("s_barrier")])
            ops += sr + so; allso.append((t, sr))
        elif split5:
            AD = Prog(); ad = AD.i
            ad("s_mul_i32 s0, s32, %d\ns_mul_i32 s1, s33, 4736\ns_add_u32 s0, s0, s1\ns_add_u32 s0, s0, %d\ns_mul_i32 s1, s33, 4608\ns_add_u32 s1, s1, s42" % (STGROW, STG))
            ad("v_lshrrev_b32 v152, 4, v0\nv_and_b32 v153, 15, v0\nv_mad_u32_u24 v154, v152, 37, v153\nv_mad_u32_u24 v154, v152, 37, v154\nv_lshl_add_u32 v160, v154, 4, s0")
            ad("v_lshlrev_b32 v152, 1, v152\nv_sub_u32 v154, v154, v152\nv_lshl_add_u32 v162, v154, 4, s1\nv_cmp_gt_u32 vcc, 8, v153\nv_bfrev_b32 v155, 1\nv_add_u32 v154, 256, v162\nv_cndmask_b32 v163, v155, v154, vcc")
            ad("v_and_b32 v154, 8, v0\nv_lshlrev_b32 v154, 4, v154\nv_sub_u32 v165, v160, v154")
            ad("v_and_b32 v153, 31, v0\nv_and_b32 v154, 16, v0\nv_add3_u32 v153, v153, v154, 24\nv_lshrrev_b32 v152, 5, v0\nv_mad_u32_u24 v154, v152, 36, v153\nv_mad_u32_u24 v154, v152, 36, v154\nv_lshl_add_u32 v164, v154, 4, s1")
            ad("v_cmp_le_u32 vcc, 36, v153\nv_lshl_add_u32 v154, v152, 1, v154\nv_lshl_add_u32 v161, v154, 4, s0\nv_add_u32 v154, 16, v161\nv_cndmask_b32 v161, v161, v154, vcc")
            LA5 = ["v160", "v160 offset:656", "v165 offset:256", "v161", "v161 offset:2368"]
            GA5 = [(162, 0), (162, 640), (163, 0), (164, 0), (164, 2304)]
            adr = [Op('V' if o[1].startswith("v_") else 'S', o) for o in AD.ops]
            adr[0].deps.append((prevval, 1)); adr[0].early = base + 50; chain(adr); pace(adr, base + 60, base + 100); ops += adr
            for o in sw[:3]: o.items = [(o.items[0][0], o.items[0][1], "sw5a")]; o.dead = min(o.deps[0][0].dead + 4, base + xe - 4)
            pin.setdefault(base + xe, []).extend([WL("sw5a"), I("s_barrier")]); sw5a = sw[:3]
            for m in range(5):
                sr[m].items = [LG("ds_read_b128 %s, %s" % (ar(SD + 4 * m), LA5[m]), "sr5_%d" % m)]
                so[2 * m + 1].items = [VM("buffer_store_dwordx4 %s, v%d, s[24:27], s38 offen offset:%d %s" % (ar(SD + 4 * m), GA5[m][0], GA5[m][1], stflags), "st")]
            for m in range(3):
                sr[m].early = base + xe + 1; sr[m].dead = sr[m].early + m; sr[m].deps.append((adr[-1], 1))
                so[2 * m].deps = [(sr[m], 6)]; so[2 * m].dead = base + xe + 7 + 2 * m
                so[2 * m + 1].early = 0; so[2 * m + 1].dead = base + xe + 8 + 2 * m
            ops += sr[:3] + so[:6]
            tail = (sr[3:], so[6:])
        else: tail = (sr, so)
        if fine is not None:
            if t == fine[0]:
                for p_ in fine[1]: pin.setdefault(base + p_, []).extend(stamp())
        elif stamps and (not pfine or t == 0): pin.setdefault(base + 161, []).extend(stamp())
    out, est, pend, late = schedule(mf, ops, pin, wgap=wgap, rgap=rgap, vmgap=vmgap)
    if estonly == 'map':
        row = []; cur = None
        for o in out:
            t_ = o[1] if o[0] in ('i', 'vm', 'lg') else 'wait'
            if isinstance(t_, str) and t_.startswith("v_mfma"): cur = []; row.append(cur)
            else: cur.append('c' if t_ == 'wait' else 'W' if ('write' in t_ or 'store' in t_) else 'R' if ('read_b' in t_ or 'load' in t_) else 'v' if t_.startswith('v_') else 's')
        for g in range(162 * mapit, 162 * mapit + 162): print(g % 162, "".join(row[g]), est[g], end=" | ")
        print()
    if estonly: return [sum(est[162 * t:162 * t + 162]) for t in range(6)], len([l for l in late if l[1] < 900])
    if verbose:
        print("main est cycles per iteration:", [sum(est[162 * t:162 * t + 162]) for t in range(6)])
        print("late:", late)
        if fine:
            b = 162 * fine[0]; pts = fine[1]
            print("est ranges", [(pts[i], pts[i+1], sum(est[b+pts[i]+1:b+pts[i+1]+1])) for i in range(len(pts)-1)])
    if split5:
        for n, o in enumerate(mid): assert o.gap is not None and o.gap <= o.lim, (n, o.gap)
    elif midadd:
        for n, o in enumerate(mid): assert o.gap is not None and o.gap <= 810 + 133 + 3 * (n // 4), (n, o.gap)
    for t, so in allso:
        tb = t + 2 if onebar else t + 1
        if tb < 6: assert all(o.gap is not None and o.gap < lastew[tb].gap for o in so), t
    if split5: assert all(o.gap is not None and o.gap < 810 + xe for o in sw5a)
    for o in ops:
        if o.gap is None: continue
        if o.name.startswith("vw0"): assert o.gap < xbpos
        elif o.name.startswith("vw") and shift and o.name.endswith("_3"): tt = int(o.name[2]); assert o.gap < 162 * tt + x2pos and (tt < 2 or o.gap > X1[tt - 2]), o.name
        elif o.name.startswith("vw"): tt = int(o.name[2]); assert o.gap < X1[tt - 1] and (tt < 2 or o.gap > X1[tt - 2]), o.name
    P.ext(out)
    if not strict: e("s_nop 7")
    pend.sort(key=lambda o: (o.kind != 'W', o.dead))
    while pend:
        for o in pend:
            if all(d.gap is not None for d, k in o.deps): P.ext(o.items); o.gap = 10**6; pend.remove(o); break
        else: raise Exception("stuck")
    P.wl("sw5"); e("s_barrier")
    for o in tail[0]: P.ext(o.items)
    for o in tail[1][:-1]: P.ext(o.items)
    if stamps:
        P.ext(stamp())
        e("s_waitcnt vmcnt(0)"); P.ext(stamp())
        e("s_waitcnt lgkmcnt(0)\ns_cmp_lg_u32 s96, 0\ns_cbranch_scc1 L_end")
        if probe is not None:
            a, b = probe[:2]
            if len(probe) > 2: e("s_sub_u32 s3, s%d, s%d\ns_add_u32 s3, s3, 4000" % (44 + 4 * b, 44 + 4 * a))
            else: e("s_sub_u32 s3, s%d, s%d\ns_mul_i32 s3, s3, 10\ns_add_u32 s3, s3, 4000" % (46 + 4 * b, 46 + 4 * a))
            if pwg is not None: e("s_cmp_lg_u32 s2, %d\ns_cselect_b32 s3, 4000, s3" % pwg)
            e("L_spin:\ns_memrealtime s[4:5]\ns_waitcnt lgkmcnt(0)\ns_sub_u32 s4, s4, s46\ns_cmp_lt_u32 s4, s3\ns_cbranch_scc1 L_spin\ns_branch L_end")
        e("s_lshl_b32 s3, s2, 8\nv_mov_b32 v1, s3")
        for i in range(nst[0]):
            for j in range(4): e("v_mov_b32 v%d, s%d" % (4 + j, 44 + 4 * i + j))
            e("buffer_store_dwordx4 v[4:7], v1, s[28:31], 0 offen offset:%d\ns_nop 1" % (16 * i))
    e("L_end:\ns_endpgm")
    for z in spins: e(z)
    assert nst[0] <= 12
    body = P.text()
    if strict: body = hazcheck.pad(body)
    if stubs: body, ns = add_page_stubs(body, "L_back", 0x300 if palign else 0xd00, split=(stubs == 3))
    txt = HEADER.format(grid=256, block=256, lds=163840, comment=DOC) + body + \
        FOOTER.format(nv=512, ns=102, acc=256, extra="  .amdhsa_float_denorm_mode_32 3\n")
    if palign: txt = txt.replace(".text\n", ".text\n.p2align 12\n", 1)
    return txt, nst[0]
if __name__ == "__main__":
    sys.path.insert(0, "bench")
    from build import build
    import json
    out = []
    def mk(name, **kw):
        t, n = gen(**kw); open("bench/%s.s" % name, "w").write(t); build("bench/%s.s" % name, "bench/%s.co" % name)
        out.append("%s.co:256:256:163840:%d" % (name, n))
    exec(sys.argv[1])
    open("args.txt", "w").write(" ".join(out))
    print(json.dumps(["bench/run_host", "bench/args.txt"] + ["bench/" + x.split(":")[0] for x in out]))
```
